```python
import torch

def _softmax(x, axis=-1):
    return torch.softmax(x, dim=axis)
def _gelu(x):
    return torch.nn.functional.gelu(x, approximate="tanh")
def _silu(x):
    return torch.nn.functional.silu(x)
def _sigmoid(x):
    return torch.sigmoid(x)
def _layernorm(x, axis=-1, eps=1e-5):
    m = x.mean(dim=axis, keepdim=True)
    v = x.var(dim=axis, keepdim=True, unbiased=False)
    return (x - m) / torch.sqrt(v + eps)
def _scatter_add(tgt, idx, src, axis=0):
    return tgt.clone().index_add_(axis, idx, src)
def _segment_sum(src, seg, n):
    out = torch.zeros((n,) + src.shape[1:], dtype=src.dtype)
    return out.index_add_(0, seg, src)
def _pad(x, pw):
    flat = tuple(v for pair in reversed(pw) for v in pair)
    return torch.nn.functional.pad(x, flat)

kernel_name = 'interleave_layers__ssm_conv_h3__dense_activation_relu__prompt'

def setup_inputs():

    _w = (lambda a: (lambda t: t.to(torch.bfloat16) if t.is_floating_point() else t)(torch.as_tensor(a)))
    def _A_setup():
        B, S, D = 1, 2048, 448
        ks = 4
        return {
            "q": _w((lambda *s: torch.randn(*s, dtype=torch.bfloat16) * 0.05)(B, S, D)),
            "k": _w((lambda *s: torch.randn(*s, dtype=torch.bfloat16) * 0.8)(B, S, D)),
            "v": _w((lambda *s: torch.randn(*s, dtype=torch.bfloat16) * 0.8)(B, S, D)),
            "shift_k": _w((lambda *s: torch.randn(*s, dtype=torch.bfloat16) * 0.8)(D, ks) * 0.5),
            "ssm_k": _w((lambda *s: torch.randn(*s, dtype=torch.bfloat16) * 0.8)(D, S) * (1.0 / S ** 0.5)),
            "ssm_D": _w((lambda *s: torch.randn(*s, dtype=torch.bfloat16) * 0.8)(D)),
        }
    _A_in = _A_setup()

    def _B_setup():
        B, S, D, Dff = 1, 2048, 448, 1792
        return {
            "x": _w((lambda *s: torch.randn(*s, dtype=torch.bfloat16) * 0.05)(B, S, D)),
            "w1": _w((lambda *s: torch.randn(*s, dtype=torch.bfloat16) * 0.1)(D, Dff)),
            "w2": _w((lambda *s: torch.randn(*s, dtype=torch.bfloat16) * 0.1)(Dff, D)),
        }
    _B_in = _B_setup()

    return {
        "A_q": _A_in["q"],
        "A_k": _A_in["k"],
        "A_v": _A_in["v"],
        "A_shift_k": _A_in["shift_k"],
        "A_ssm_k": _A_in["ssm_k"],
        "A_ssm_D": _A_in["ssm_D"],
        "B_x": _B_in["x"],
        "B_w1": _B_in["w1"],
        "B_w2": _B_in["w2"],
    }

def reference(A_q, A_k, A_v, A_shift_k, A_ssm_k, A_ssm_D, B_x, B_w1, B_w2):
    def _A_ref(q, k, v, shift_k, ssm_k, ssm_D):
        B, S, D = q.shape
        ks = shift_k.shape[-1]
        k_pad = _pad(k, ((0, 0), (ks - 1, 0), (0, 0)))
        k_shift = torch.zeros_like(k)
        for t in range(ks):
            k_shift = k_shift + k_pad[:, t:t + S, :] * shift_k[:, ks - 1 - t][None, None, :]
        kv = k_shift * v
        L = 2 * S
        kv_pad = _pad(kv, ((0, 0), (0, S), (0, 0)))
        kf_pad = _pad(ssm_k, ((0, 0), (0, S)))
        kv_f = (lambda x, axes=(-2,-1): torch.fft.rfft2(x.float(), dim=axes))(kv_pad[:, None, :, :], axes=(1, 2))
        kf_f = (lambda x, axes=(-2,-1): torch.fft.rfft2(x.float(), dim=axes))(kf_pad[:, None, :], axes=(1, 2))
        kf_f = (lambda x, *d: x.permute(*d))(kf_f, 1, 2, 0)
        y_f = kv_f * kf_f[None, :, :, :]
        y = (lambda x, s, axes=(-2,-1): torch.fft.irfft2(x, s=s, dim=axes).to(torch.bfloat16))(y_f, (1, L), axes=(1, 2))[:, 0, :S, :]
        y = y + kv * ssm_D[None, None, :]
        return q * y

    def _B_ref(x, w1, w2):
        h = torch.einsum("bsd,df->bsf", x, w1)
        zero = torch.zeros_like(h)
        h = torch.maximum(h, zero)
        return torch.einsum("bsf,fd->bsd", h, w2)

    x = A_q
    x = x + _A_ref(_layernorm(x, axis=-1), A_k, A_v, A_shift_k, A_ssm_k, A_ssm_D)
    x = x + _B_ref(_layernorm(x, axis=-1), B_w1, B_w2)
    x = x + _A_ref(_layernorm(x, axis=-1), A_k, A_v, A_shift_k, A_ssm_k, A_ssm_D)
    x = x + _B_ref(_layernorm(x, axis=-1), B_w1, B_w2)
    return x
```

```python
import sys

NAME = 'interleave_layers__ssm_conv_h3__dense_activation_relu__prompt'
S, D, F = 2048, 448, 1792
ROWB = D * 2
NB = S * ROWB

WS_KVR = 0x000000
WS_YT = 0x200000
WS_X1 = 0x400000
WS_XN1 = 0x600000
WS_XN3 = 0x800000
WS_X3 = 0xA00000
WS_OUT1 = 0xC00000
WS_H1 = 0x1000000
WS_H2 = 0x1800000
WS_FLAG = 0x2000000
WS_SIZE = 0x2100000

HEADER = """; Kernarg layout for this problem (96 bytes, ptrs only, base s[0:1]):
"""


class Asm:
    def __init__(self):
        self.L = []
        self.uid = 0

    def __call__(self, s):
        for line in s.strip('\n').split('\n'):
            self.L.append('  ' + line.strip())

    def label(self, name):
        self.L.append(name + ':')

    def newlabel(self, base):
        self.uid += 1
        return f'L_{base}_{self.uid}'

    def text(self):
        return '\n'.join(self.L) + '\n'


sQ, sK, sV, sSH, sSK, sSD, sBX, sW1, sW2, sOUT, sDBG, sWS = 16, 18, 20, 22, 24, 26, 28, 30, 32, 34, 36, 38
SRD_WS, SRD_A, SRD_B, SRD_C = 40, 44, 48, 52
sWAVE = 3
sG = 4
sJ = 5
sT0, sT1, sT2, sT3, sT4, sT5 = 6, 7, 8, 9, 10, 11
sMASKHI = 12
sT6, sT7, sT8 = 13, 14, 15
sC0 = 56


def srd(a, dst, base, nbytes, off_sgpr=None):
    if off_sgpr is None:
        a(f's_mov_b32 s{dst}, s{base}')
        a(f's_mov_b32 s{dst+1}, s{base+1}')
    else:
        a(f's_add_u32 s{dst}, s{base}, s{off_sgpr}')
        a(f's_addc_u32 s{dst+1}, s{base+1}, 0')
    a(f's_mov_b32 s{dst+2}, {nbytes:#x}')
    a(f's_mov_b32 s{dst+3}, 0x20000')


def prologue(a, nwg, end_label):
    a(f's_cmp_ge_u32 s2, {nwg}')
    a(f's_cbranch_scc1 {end_label}')
    a('s_load_dwordx16 s[16:31], s[0:1], 0')
    a('s_load_dwordx8 s[32:39], s[0:1], 64')
    a('v_lshrrev_b32 v1, 6, v0')
    a('v_and_b32 v0, 63, v0')
    a('s_nop 0')
    a(f'v_readfirstlane_b32 s{sWAVE}, v1')
    a(f's_mov_b32 s{sMASKHI}, 0xffff0000')
    a(f's_and_b32 s{sT0}, s2, 7')
    a(f's_lshr_b32 s{sT1}, s2, 3')
    a(f's_lshl_b32 s{sG}, s{sT0}, 1')
    a(f's_lshr_b32 s{sT0}, s{sT1}, 4')
    a(f's_add_u32 s{sG}, s{sG}, s{sT0}')
    a(f's_and_b32 s{sJ}, s{sT1}, 15')
    a('s_waitcnt lgkmcnt(0)')
    srd(a, SRD_WS, sWS, WS_SIZE)


def phase_kv(a, st=''):
    srd(a, SRD_A, sK, NB)
    srd(a, SRD_B, sV, NB)
    srd(a, SRD_C, sSH, D * 8)
    a(f'v_lshl_add_u32 v1, s{sWAVE}, 6, v0')
    a('v_mul_u32_u24 v2, 2341, v1')
    a('v_lshrrev_b32 v2, 16, v2')
    a('v_mul_u32_u24 v3, 28, v2')
    a('v_sub_u32 v3, v1, v3')
    a(f's_lshr_b32 s{sT0}, s2, 3')
    a(f's_and_b32 s{sT1}, s2, 7')
    a(f's_mul_i32 s{sT1}, s{sT1}, 56')
    a(f's_lshl_b32 s{sT2}, s{sT0}, 3')
    a(f'v_add_u32 v4, s{sT2}, v2')
    a(f'v_lshl_add_u32 v5, v3, 1, s{sT1}')
    a(f'v_mul_u32_u24 v6, {8*ROWB}, v4')
    a('v_lshl_add_u32 v6, v5, 1, v6')
    a(f'v_subrev_u32 v7, {3*ROWB}, v6')
    a(f'v_add_u32 v8, {4*ROWB}, v6')
    a('v_lshlrev_b32 v9, 3, v5')
    a('v_lshlrev_b32 v10, 12, v5')
    a('v_lshl_add_u32 v10, v4, 4, v10')
    a('v_cmp_gt_u32 vcc, 224, v1')
    a(f's_and_saveexec_b64 s[{sC0}:{sC0+1}], vcc')
    for r in range(3):
        a(f'buffer_load_dword v{20+r}, v7, s[{SRD_A}:{SRD_A+3}], 0 offen offset:{r*ROWB}')
    for r in range(4):
        a(f'buffer_load_dword v{23+r}, v6, s[{SRD_A}:{SRD_A+3}], 0 offen offset:{r*ROWB}')
    for r in range(4):
        a(f'buffer_load_dword v{27+r}, v8, s[{SRD_A}:{SRD_A+3}], 0 offen offset:{r*ROWB}')
    a(f'buffer_load_dwordx4 v[40:43], v9, s[{SRD_C}:{SRD_C+3}], 0 offen')
    for r in range(4):
        a(f'buffer_load_dword v{32+r}, v6, s[{SRD_B}:{SRD_B+3}], 0 offen offset:{r*ROWB}')
    for r in range(4):
        a(f'buffer_load_dword v{36+r}, v8, s[{SRD_B}:{SRD_B+3}], 0 offen offset:{r*ROWB}')
    a('s_waitcnt vmcnt(8)')
    for r in range(11):
        a(f'v_lshlrev_b32 v{44+2*r}, 16, v{20+r}')
        a(f'v_and_b32 v{45+2*r}, s{sMASKHI}, v{20+r}')
    a('v_lshlrev_b32 v66, 16, v40'); a('v_lshlrev_b32 v67, 16, v42')
    a(f'v_and_b32 v68, s{sMASKHI}, v40'); a(f'v_and_b32 v69, s{sMASKHI}, v42')
    a('v_lshlrev_b32 v70, 16, v41'); a('v_lshlrev_b32 v71, 16, v43')
    a(f'v_and_b32 v72, s{sMASKHI}, v41'); a(f'v_and_b32 v73, s{sMASKHI}, v43')
    a('s_waitcnt vmcnt(0)')

    def rnd(p):
        a(f'v_cvt_pk_bf16_f32 v{p}, v{p}, v{p+1}')
        a(f'v_and_b32 v{p+1}, s{sMASKHI}, v{p}')
        a(f'v_lshlrev_b32 v{p}, 16, v{p}')
    for i0 in range(0, 8, 2):
        T = {i0: 74, i0 + 1: 82}
        for i in (i0, i0 + 1):
            t = T[i]
            for jj, tap in enumerate((3, 2, 1, 0)):
                kr = 44 + 2 * (i + jj)
                a(f'v_pk_mul_f32 v[{t+2*jj}:{t+2*jj+1}], v[{kr}:{kr+1}], v[{66+2*tap}:{67+2*tap}]')
        for jj in range(4):
            for i in (i0, i0 + 1):
                rnd(T[i] + 2 * jj)
        for jj in range(1, 4):
            for i in (i0, i0 + 1):
                t = T[i]
                a(f'v_pk_add_f32 v[{t}:{t+1}], v[{t}:{t+1}], v[{t+2*jj}:{t+2*jj+1}]')
            for i in (i0, i0 + 1):
                rnd(T[i])
        for i in (i0, i0 + 1):
            t = T[i]
            a(f'v_lshlrev_b32 v{t+2}, 16, v{32+i}')
            a(f'v_and_b32 v{t+3}, s{sMASKHI}, v{32+i}')
        for i in (i0, i0 + 1):
            t = T[i]
            a(f'v_pk_mul_f32 v[{t}:{t+1}], v[{t}:{t+1}], v[{t+2}:{t+3}]')
        for i in (i0, i0 + 1):
            t = T[i]
            a(f'v_cvt_pk_bf16_f32 v{90+i}, v{t}, v{t+1}')
    a(f's_mov_b32 s{sT0}, 0x05040100')
    a(f's_mov_b32 s{sT1}, 0x07060302')
    for w in range(4):
        a(f'v_perm_b32 v{100+w}, v{90+6-2*w}, v{90+7-2*w}, s{sT0}')
        a(f'v_perm_b32 v{104+w}, v{90+6-2*w}, v{90+7-2*w}, s{sT1}')
    a(f's_mov_b32 s{sT2}, {WS_KVR}')
    a(f's_mov_b32 s{sT3}, {WS_KVR + 4096}')
    a(f'buffer_store_dwordx4 v[100:103], v10, s[{SRD_WS}:{SRD_WS+3}], s{sT2} offen {st}')
    a(f'buffer_store_dwordx4 v[104:107], v10, s[{SRD_WS}:{SRD_WS+3}], s{sT3} offen {st}')
    a(f's_mov_b64 exec, s[{sC0}:{sC0+1}]')


HC_OFF = [0, 1, 5, 9, 13, 5, 9, 13]
HC_BASE = [r * 4352 + 16 * HC_OFF[r] for r in range(8)]
C_KV = 35072
C_SLOT = 35072 + 33 * 144 + 112
assert C_SLOT % 256 == 0
C_RED = 0
C_YS = 8192


def phase_conv(a, ld='', st='', lds0=0):
    a(f's_lshr_b32 s{sT0}, s{sWAVE}, 1')
    a(f's_and_b32 s{sT1}, s{sWAVE}, 1')
    a(f's_lshl_b32 s{sT2}, s2, 1')
    a(f's_add_u32 s{sT2}, s{sT2}, s{sT0}')
    a(f's_lshl_b32 s{sT3}, s{sT2}, 12')
    srd(a, SRD_A, sSK, 4096, sT3)
    srd(a, SRD_B, sSD, D * 2)
    a(f's_mul_i32 s{sT4}, s{sT0}, {C_SLOT}')
    if lds0:
        a(f's_add_u32 s{sT4}, s{sT4}, {lds0}')
    a(f'v_lshl_add_u32 v1, s{sT1}, 6, v0')
    a('v_lshlrev_b32 v2, 5, v1')
    a('v_subrev_u32 v3, 16, v2')
    a(f's_add_u32 s{sT5}, s{sT3}, {WS_KVR}')
    a(f'buffer_load_dwordx4 v[20:23], v3, s[{SRD_A}:{SRD_A+3}], 0 offen')
    a(f'buffer_load_dwordx4 v[24:27], v2, s[{SRD_A}:{SRD_A+3}], 0 offen')
    a(f'buffer_load_dwordx4 v[28:31], v2, s[{SRD_A}:{SRD_A+3}], 0 offen offset:16')
    a(f's_lshl_b32 s{sT6}, s{sT2}, 1')
    a(f'v_mov_b32 v4, s{sT6}')
    a(f'buffer_load_ushort v5, v4, s[{SRD_B}:{SRD_B+3}], 0 offen')
    a(f'buffer_load_dwordx4 v[32:35], v2, s[{SRD_WS}:{SRD_WS+3}], s{sT5} offen {ld}')
    a(f'buffer_load_dwordx4 v[36:39], v2, s[{SRD_WS}:{SRD_WS+3}], s{sT5} offen offset:16 {ld}')
    for i in range(4):
        a(f'v_mov_b32 v{40+i}, 0')
    a('v_lshrrev_b32 v6, 3, v0')
    emit_hcbase(a, 'v6', 'v7', 'v8')
    a('v_and_b32 v8, 7, v0')
    a('v_lshl_add_u32 v7, v8, 4, v7')
    a(f'v_add_u32 v7, s{sT4}, v7')
    a(f'v_lshl_add_u32 v9, v8, 4, s{sT4}')
    lz = a.newlabel('noz')
    a(f's_cmp_lg_u32 s{sT1}, 0')
    a(f's_cbranch_scc1 {lz}')
    a('ds_write_b128 v7, v[40:43]')
    a(f'ds_write_b128 v9, v[40:43] offset:{C_KV}')
    a.label(lz)
    a(f'v_add_u32 v10, s{sT4}, v2')
    a('v_lshrrev_b32 v11, 2, v1')
    a('v_mul_u32_u24 v11, 144, v11')
    a('v_and_b32 v12, 3, v1')
    a('v_lshl_add_u32 v11, v12, 5, v11')
    a(f'v_add_u32 v11, s{sT4}, v11')
    a('s_waitcnt vmcnt(3)')
    for i in range(10):
        a(f'v_mov_b32 v{44+i}, v{21+i}')
    for i in range(11):
        a(f'v_alignbit_b32 v{54+i}, v{21+i}, v{20+i}, 16')
    for i in range(10):
        a(f'v_alignbit_b32 v{66+i}, v{22+i}, v{21+i}, 16')
    src = {0: 20, 2: 44, 4: 22, 6: 46, 1: 54, 3: 66, 5: 56, 7: 68}
    for r in range(8):
        s = src[r]
        a(f'ds_write_b128 v10, v[{s}:{s+3}] offset:{HC_BASE[r]+112}')
        a(f'ds_write_b128 v10, v[{s+4}:{s+7}] offset:{HC_BASE[r]+128}')
    a(f'ds_write_b128 v10, v[28:31] offset:{HC_BASE[0]+144}')
    a('s_waitcnt vmcnt(0)')
    a(f'ds_write_b128 v11, v[32:35] offset:{C_KV+144}')
    a(f'ds_write_b128 v11, v[36:39] offset:{C_KV+160}')
    a('v_lshlrev_b32 v5, 16, v5')
    a('v_and_b32 v6, 31, v0')
    a('v_lshrrev_b32 v7, 5, v0')
    a('v_add_u32 v8, 1, v6')
    a('v_and_b32 v9, 7, v8')
    emit_hcbase(a, 'v9', 'v12', 'v13')
    a('v_lshrrev_b32 v8, 3, v8')
    a('v_sub_u32 v8, v8, v7')
    a('v_lshl_add_u32 v12, v8, 4, v12')
    a(f's_lshl_b32 s{sT6}, s{sT1}, 11')
    a(f's_add_u32 s{sT6}, s{sT6}, s{sT4}')
    a(f's_add_u32 s{sT6}, s{sT6}, {112-96}')
    a(f'v_add_u32 v12, s{sT6}, v12')
    a(f'v_lshl_add_u32 v13, v7, 4, s{sT4}')
    a(f'v_add_u32 v13, {C_KV}, v13')
    a(f's_lshl_b32 s{sT6}, s{sT1}, 4')
    a(f'v_subrev_u32 v14, s{sT6}, v6')
    a('v_add_u32 v14, 1, v14')
    a('v_mul_i32_i24 v14, 144, v14')
    a('v_add_u32 v14, v14, v13')
    for i in range(32):
        a(f'v_mov_b32 v{64+i}, 0')
    a('s_waitcnt lgkmcnt(0)')
    a('s_barrier')
    AP = [96, 104, 112]
    AZ = [120, 128]
    BB = [136, 152]
    def rdA(dst, ci, delta):
        a(f'ds_read_b128 v[{dst}:{dst+3}], v12 offset:{128*ci + 2*delta + 96}')
    def loads(ci):
        a('v_max_i32 v15, v14, v13')
        a('v_subrev_u32 v14, 144, v14')
        b = BB[ci % 2]
        a(f'ds_read_b128 v[{b}:{b+3}], v15')
        rdA(AP[ci % 3], ci, 32)
        rdA(AZ[ci % 2], ci, 0)
        a(f'ds_read_b128 v[{b+4}:{b+7}], v15 offset:32')
        rdA(AP[ci % 3] + 4, ci, 16)
        rdA(AZ[ci % 2] + 4, ci, -16)
        a(f'ds_read_b128 v[{b+8}:{b+11}], v15 offset:64')
        a(f'ds_read_b128 v[{b+12}:{b+15}], v15 offset:96')
    rdA(AP[2], 0, -32)
    rdA(AP[2] + 4, 0, -48)
    loads(0)
    def mf(acc, A, B):
        a(f'v_mfma_f32_32x32x16_bf16 v[{acc}:{acc+15}], v[{A}:{A+3}], v[{B}:{B+3}], v[{acc}:{acc+15}]')
    for ci in range(16):
        if ci + 1 < 16:
            loads(ci + 1)
            a('s_waitcnt lgkmcnt(8)')
        else:
            a('s_waitcnt lgkmcnt(0)')
        p, pp, z, b = AP[ci % 3], AP[(ci + 2) % 3], AZ[ci % 2], BB[ci % 2]
        mf(80, p, b); mf(64, z, b)
        mf(80, p + 4, b + 4); mf(64, z + 4, b + 4)
        mf(80, z, b + 8); mf(64, pp, b + 8)
        mf(80, z + 4, b + 12); mf(64, pp + 4, b + 12)
    a('s_barrier')
    a(f's_lshl_b32 s{sT6}, s{sT1}, 12')
    a(f's_add_u32 s{sT6}, s{sT6}, s{sT4}')
    a(f'v_lshl_add_u32 v16, v0, 4, s{sT6}')
    a(f's_xor_b32 s{sT7}, s{sT1}, 1')
    a(f's_lshl_b32 s{sT7}, s{sT7}, 12')
    a(f's_add_u32 s{sT7}, s{sT7}, s{sT4}')
    a(f'v_lshl_add_u32 v17, v0, 4, s{sT7}')
    a('s_nop 7')
    l1, l2 = a.newlabel('cx'), a.newlabel('cy')
    a(f's_cmp_lg_u32 s{sT1}, 0')
    a(f's_cbranch_scc1 {l1}')
    for g in range(4):
        a(f'ds_write_b128 v16, v[{80+4*g}:{83+4*g}] offset:{C_RED+1024*g}')
    a(f's_branch {l2}')
    a.label(l1)
    for g in range(4):
        a(f'ds_write_b128 v16, v[{64+4*g}:{67+4*g}] offset:{C_RED+1024*g}')
    for i in range(16):
        a(f'v_mov_b32 v{64+i}, v{80+i}')
    a.label(l2)
    a('v_mul_u32_u24 v18, 144, v6')
    a('v_xor_b32 v19, 1, v7')
    a('v_lshl_add_u32 v18, v19, 3, v18')
    a(f's_lshl_b32 s{sT6}, s{sT1}, 6')
    a(f's_add_u32 s{sT6}, s{sT6}, s{sT4}')
    a(f'v_add_u32 v18, s{sT6}, v18')
    for g in range(4):
        a(f'ds_read_b64 v[{96+2*g}:{97+2*g}], v18 offset:{C_KV+144+16*g}')
    a('s_waitcnt lgkmcnt(0)')
    a('s_barrier')
    for g in range(4):
        a(f'ds_read_b128 v[{80+4*g}:{83+4*g}], v17 offset:{C_RED+1024*g}')
    a('v_mul_u32_u24 v18, 144, v6')
    a('v_lshl_add_u32 v18, v7, 3, v18')
    a(f'v_add_u32 v18, s{sT6}, v18')
    for g in range(4):
        w0, w1 = 96 + 2 * g, 97 + 2 * g
        t = 104 + 4 * g
        a(f'v_and_b32 v{t}, s{sMASKHI}, v{w1}')
        a(f'v_lshlrev_b32 v{t+1}, 16, v{w1}')
        a(f'v_and_b32 v{t+2}, s{sMASKHI}, v{w0}')
        a(f'v_lshlrev_b32 v{t+3}, 16, v{w0}')
        for e in range(4):
            a(f'v_mul_f32 v{t+e}, v5, v{t+e}')
        for e in (0, 2):
            a(f'v_cvt_pk_bf16_f32 v{t+e}, v{t+e}, v{t+e+1}')
            a(f'v_and_b32 v{t+e+1}, s{sMASKHI}, v{t+e}')
            a(f'v_lshlrev_b32 v{t+e}, 16, v{t+e}')
    a('s_waitcnt lgkmcnt(0)')
    for i in range(0, 16, 2):
        a(f'v_pk_add_f32 v[{64+i}:{65+i}], v[{64+i}:{65+i}], v[{80+i}:{81+i}]')
        a(f'v_cvt_pk_bf16_f32 v{64+i}, v{64+i}, v{65+i}')
        a(f'v_and_b32 v{65+i}, s{sMASKHI}, v{64+i}')
        a(f'v_lshlrev_b32 v{64+i}, 16, v{64+i}')
        a(f'v_pk_add_f32 v[{64+i}:{65+i}], v[{64+i}:{65+i}], v[{104+i}:{105+i}]')
        a(f'v_cvt_pk_bf16_f32 v{80+i//2}, v{64+i}, v{65+i}')
    for g in range(4):
        a(f'ds_write_b64 v18, v[{80+2*g}:{81+2*g}] offset:{C_YS+16*g}')
    a('s_waitcnt lgkmcnt(0)')
    a('s_barrier')
    a(f'ds_read_b128 v[20:23], v11 offset:{C_YS}')
    a(f'ds_read_b128 v[24:27], v11 offset:{C_YS+16}')
    a(f's_add_u32 s{sT5}, s{sT3}, {WS_YT}')
    a('s_waitcnt lgkmcnt(0)')
    a(f'buffer_store_dwordx4 v[20:23], v2, s[{SRD_WS}:{SRD_WS+3}], s{sT5} offen {st}')
    a(f'buffer_store_dwordx4 v[24:27], v2, s[{SRD_WS}:{SRD_WS+3}], s{sT5} offen offset:16 {st}')


def emit_hcbase(a, r, dst, tmp):
    a(f'v_subrev_u32 {tmp}, 1, {r}')
    a(f'v_subrev_u32 {dst}, 4, {r}')
    a(f'v_cmp_lt_u32 vcc, 4, {r}')
    a('s_nop 1')
    a(f'v_cndmask_b32 {tmp}, {tmp}, {dst}, vcc')
    a(f'v_lshlrev_b32 {tmp}, 6, {tmp}')
    a(f'v_add_u32 {tmp}, 16, {tmp}')
    a(f'v_cmp_eq_u32 vcc, 0, {r}')
    a('s_nop 1')
    a(f'v_cndmask_b32 {tmp}, {tmp}, 0, vcc')
    a(f'v_mul_u32_u24 {dst}, 4352, {r}')
    a(f'v_add_u32 {dst}, {dst}, {tmp}')


def wave_sum2(a, va, vb, sa, sb):
    steps = ['quad_perm:[1,0,3,2] row_mask:0xf bank_mask:0xf', 'quad_perm:[2,3,0,1] row_mask:0xf bank_mask:0xf',
             'row_half_mirror row_mask:0xf bank_mask:0xf', 'row_mirror row_mask:0xf bank_mask:0xf',
             'row_bcast:15 row_mask:0xa bank_mask:0xf', 'row_bcast:31 row_mask:0xc bank_mask:0xf']
    a('s_nop 1')
    for st in steps:
        a(f'v_add_f32_dpp v{va}, v{va}, v{va} {st}')
        a(f'v_add_f32_dpp v{vb}, v{vb}, v{vb} {st}')
        a('s_nop 0')
    a(f'v_readlane_b32 s{sa}, v{va}, 63')
    a(f'v_readlane_b32 s{sb}, v{vb}, 63')


def ln2(a, X, O, T, valid):
    s = sC0 + 2
    for r in range(2):
        x = X[r]
        a(f'v_pk_add_f32 v[{T+4*r}:{T+4*r+1}], v[{x}:{x+1}], v[{x+2}:{x+3}]')
        a(f'v_pk_add_f32 v[{T+4*r+2}:{T+4*r+3}], v[{x+4}:{x+5}], v[{x+6}:{x+7}]')
    for r in range(2):
        a(f'v_pk_add_f32 v[{T+4*r}:{T+4*r+1}], v[{T+4*r}:{T+4*r+1}], v[{T+4*r+2}:{T+4*r+3}]')
    for r in range(2):
        a(f'v_add_f32 v{T+4*r}, v{T+4*r}, v{T+4*r+1}')
    wave_sum2(a, T, T + 4, s, s + 1)
    a(f's_mov_b32 s{s+2}, {f32bits(1.0/448):#x}')
    a('s_nop 0')
    for r in range(2):
        a(f'v_mov_b32 v{T+8+r}, s{s+r}')
    for r in range(2):
        a(f'v_mul_f32 v{T+8+r}, s{s+2}, v{T+8+r}')
    for r in range(2):
        x = X[r]
        for e in range(8):
            a(f'v_sub_f32 v{O[r]+e}, v{x+e}, v{T+8+r}')
        a(f'v_mul_f32 v{T+4*r}, v{O[r]}, v{O[r]}')
        for e in range(1, 8):
            a(f'v_fmac_f32 v{T+4*r}, v{O[r]+e}, v{O[r]+e}')
        a(f'v_mul_f32 v{T+4*r}, v{valid}, v{T+4*r}')
    wave_sum2(a, T, T + 4, s, s + 1)
    a(f'v_cvt_pk_bf16_f32 v{T+8}, v{T+8}, v{T+9}')
    a(f'v_and_b32 v{T+9}, s{sMASKHI}, v{T+8}')
    a(f'v_lshlrev_b32 v{T+8}, 16, v{T+8}')
    for r in range(2):
        a(f'v_mov_b32 v{T+10+r}, s{s+r}')
    for r in range(2):
        a(f'v_mul_f32 v{T+10+r}, s{s+2}, v{T+10+r}')
    def rnd(p):
        a(f'v_cvt_pk_bf16_f32 v{p}, v{p}, v{p+1}')
        a(f'v_and_b32 v{p+1}, s{sMASKHI}, v{p}')
        a(f'v_lshlrev_b32 v{p}, 16, v{p}')
    rnd(T + 10)
    for r in range(2):
        a(f'v_add_f32 v{T+10+r}, {f32bits(1e-5):#x}, v{T+10+r}')
    rnd(T + 10)
    for r in range(2):
        a(f'v_sqrt_f32 v{T+10+r}, v{T+10+r}')
    a('s_nop 0')
    rnd(T + 10)
    for r in range(2):
        a(f'v_rcp_f32 v{T+r}, v{T+10+r}')
    a('s_nop 0')
    for r in range(2):
        a(f'v_fma_f32 v{T+2+r}, -v{T+10+r}, v{T+r}, 1.0')
    for r in range(2):
        a(f'v_fmac_f32 v{T+r}, v{T+2+r}, v{T+r}')
    for r in range(2):
        x, o = X[r], O[r]
        for e in range(8):
            a(f'v_sub_f32 v{o+e}, v{x+e}, v{T+8+r}')
        for e in range(0, 8, 2):
            rnd(o + e)
        for e in range(0, 8, 2):
            for k in (0, 1):
                a(f'v_mul_f32 v{T+4+k}, v{o+e+k}, v{T+r}')
            for k in (0, 1):
                a(f'v_fma_f32 v{T+6+k}, -v{T+4+k}, v{T+10+r}, v{o+e+k}')
            for k in (0, 1):
                a(f'v_fma_f32 v{o+e+k}, v{T+6+k}, v{T+r}, v{T+4+k}')
            rnd(o + e)


def f32bits(x):
    import struct
    return struct.unpack('<I', struct.pack('<f', x))[0]


def unpack8(a, src, dst):
    for i in range(4):
        a(f'v_lshlrev_b32 v{dst+2*i}, 16, v{src+i}')
        a(f'v_and_b32 v{dst+2*i+1}, s{sMASKHI}, v{src+i}')


def pack8(a, src, dst):
    for i in range(4):
        a(f'v_cvt_pk_bf16_f32 v{dst+i}, v{src+2*i}, v{src+2*i+1}')


def gate2(a, X, N, Y, T):
    for r in range(2):
        for e in range(8):
            if r == 0:
                a(f'v_lshlrev_b32 v{T+e}, 16, v{Y+e}')
            else:
                a(f'v_and_b32 v{T+e}, s{sMASKHI}, v{Y+e}')
        for e in range(0, 8, 2):
            n, x = N[r] + e, X[r] + e
            a(f'v_pk_mul_f32 v[{n}:{n+1}], v[{n}:{n+1}], v[{T+e}:{T+e+1}]')
            a(f'v_cvt_pk_bf16_f32 v{n}, v{n}, v{n+1}')
            a(f'v_and_b32 v{n+1}, s{sMASKHI}, v{n}')
            a(f'v_lshlrev_b32 v{n}, 16, v{n}')
            a(f'v_pk_add_f32 v[{x}:{x+1}], v[{x}:{x+1}], v[{n}:{n+1}]')
            a(f'v_cvt_pk_bf16_f32 v{x}, v{x}, v{x+1}')
            a(f'v_and_b32 v{x+1}, s{sMASKHI}, v{x}')
            a(f'v_lshlrev_b32 v{x}, 16, v{x}')


vROW = 200
vVALID = 201
vY = 202
vX0, vX1 = 210, 218


def ln_setup(a):
    a(f's_lshl_b32 s{sT0}, s{sG}, 7')
    a(f's_lshl_b32 s{sT1}, s{sJ}, 3')
    a(f's_add_u32 s{sT0}, s{sT0}, s{sT1}')
    a(f's_lshl_b32 s{sT1}, s{sWAVE}, 1')
    a(f's_add_u32 s{sT1}, s{sT1}, s{sT0}')
    a(f's_mul_i32 s{sT1}, s{sT1}, {ROWB}')
    a(f'v_lshl_add_u32 v{vROW}, v0, 4, s{sT1}')
    a('v_cmp_gt_u32 vcc, 56, v0')
    a(f'v_mov_b32 v1, 0x7ffffff0')
    a('s_nop 0')
    a(f'v_cndmask_b32 v{vROW}, v1, v{vROW}, vcc')
    a(f'v_cndmask_b32 v{vVALID}, 0, 1.0, vcc')


def gather_y(a, ld='', lds0=0):
    a(f's_lshl_b32 s{sT0}, s{sG}, 7')
    a(f's_lshl_b32 s{sT1}, s{sJ}, 3')
    a(f's_add_u32 s{sT0}, s{sT0}, s{sT1}')
    a(f's_lshl_b32 s{sT0}, s{sT0}, 1')
    a(f's_add_u32 s{sT0}, s{sT0}, {WS_YT}')
    a(f's_add_u32 s{sT1}, s{sT0}, {256*4096}')
    a(f'v_lshl_add_u32 v1, s{sWAVE}, 6, v0')
    a('v_lshlrev_b32 v2, 12, v1')
    a(f'buffer_load_dwordx4 v[4:7], v2, s[{SRD_WS}:{SRD_WS+3}], s{sT0} offen {ld}')
    lz = a.newlabel('gy')
    a(f's_cmp_eq_u32 s{sWAVE}, 3')
    a(f's_cbranch_scc1 {lz}')
    a(f'buffer_load_dwordx4 v[8:11], v2, s[{SRD_WS}:{SRD_WS+3}], s{sT1} offen {ld}')
    a.label(lz)
    a('v_lshlrev_b32 v3, 2, v1')
    a('s_waitcnt vmcnt(0)')
    for w in range(4):
        a(f'ds_write_b32 v3, v{4+w} offset:{lds0 + w*1792}')
    lz = a.newlabel('gy')
    a(f's_cbranch_scc1 {lz}')
    for w in range(4):
        a(f'ds_write_b32 v3, v{8+w} offset:{lds0 + w*1792 + 1024}')
    a.label(lz)
    a(f's_mul_i32 s{sT0}, s{sWAVE}, 1792')
    a('v_min_u32 v3, 55, v0')
    a(f'v_lshl_add_u32 v3, v3, 5, s{sT0}')
    a('s_waitcnt lgkmcnt(0)')
    a('s_barrier')
    a(f'ds_read_b128 v[{vY}:{vY+3}], v3 offset:{lds0}')
    a(f'ds_read_b128 v[{vY+4}:{vY+7}], v3 offset:{lds0+16}')
    a('v_cmp_gt_u32 vcc, 56, v0')
    a('s_waitcnt lgkmcnt(0)')
    for e in range(8):
        a(f'v_cndmask_b32 v{vY+e}, 0, v{vY+e}, vcc')


def store_rows(a, X, wsoff, T, st='', srd_=SRD_WS):
    a(f's_mov_b32 s{sT0}, {wsoff}')
    for r in range(2):
        pack8(a, X[r], T + 4 * r)
        a(f'buffer_store_dwordx4 v[{T+4*r}:{T+4*r+3}], v{vROW}, s[{srd_}:{srd_+3}], s{sT0} offen offset:{r*ROWB} {st}')


def phase_ln1_pre(a):
    srd(a, SRD_A, sQ, NB)
    a(f'buffer_load_dwordx4 v[4:7], v{vROW}, s[{SRD_A}:{SRD_A+3}], 0 offen')
    a(f'buffer_load_dwordx4 v[8:11], v{vROW}, s[{SRD_A}:{SRD_A+3}], 0 offen offset:{ROWB}')
    a('s_waitcnt vmcnt(0)')
    unpack8(a, 4, vX0)
    unpack8(a, 8, vX1)
    ln2(a, [vX0, vX1], [226, 234], 20, vVALID)


def phase_ln1_post(a, st='', save_x1=False):
    gate2(a, [vX0, vX1], [226, 234], vY, 40)
    if save_x1:
        store_rows(a, [vX0, vX1], WS_X1, 48, st)
    ln2(a, [vX0, vX1], [226, 234], 20, vVALID)
    store_rows(a, [226, 234], WS_XN1, 56, st)


def phase_ln2(a, ld='', st=''):
    a(f's_mov_b32 s{sT0}, {WS_OUT1}')
    a(f'buffer_load_dwordx4 v[4:7], v{vROW}, s[{SRD_WS}:{SRD_WS+3}], s{sT0} offen {ld}')
    a(f'buffer_load_dwordx4 v[8:11], v{vROW}, s[{SRD_WS}:{SRD_WS+3}], s{sT0} offen offset:{ROWB} {ld}')
    a('s_waitcnt vmcnt(0)')
    unpack8(a, 4, 226)
    unpack8(a, 8, 234)
    for r, (x, o) in enumerate(((vX0, 226), (vX1, 234))):
        for e in range(0, 8, 2):
            a(f'v_pk_add_f32 v[{x+e}:{x+e+1}], v[{x+e}:{x+e+1}], v[{o+e}:{o+e+1}]')
            a(f'v_cvt_pk_bf16_f32 v{x+e}, v{x+e}, v{x+e+1}')
            a(f'v_and_b32 v{x+e+1}, s{sMASKHI}, v{x+e}')
            a(f'v_lshlrev_b32 v{x+e}, 16, v{x+e}')
    ln2(a, [vX0, vX1], [226, 234], 20, vVALID)
    gate2(a, [vX0, vX1], [226, 234], vY, 40)
    store_rows(a, [vX0, vX1], WS_X3, 48, st)
    ln2(a, [vX0, vX1], [226, 234], 20, vVALID)
    store_rows(a, [226, 234], WS_XN3, 56, st)


W1_GRP = 1920
W1_BYTES = 56 * W1_GRP


def load_w1(a, lds0=0):
    srd(a, SRD_A, sW1, D * F * 2)
    a(f's_mul_i32 s{sT0}, s{sJ}, 224')
    a(f'v_lshl_add_u32 v1, s{sWAVE}, 6, v0')
    a(f's_mov_b32 s{sT1}, {(1 << 20) // 120 + 1}')
    a(f's_lshl_b32 s{sT2}, s{sWAVE}, 10')
    if lds0:
        a(f's_add_u32 s{sT2}, s{sT2}, {lds0}')
    for it in range(27):
        last = (it == 26)
        lz = None
        if last:
            lz = a.newlabel('w1')
            a(f's_cmp_lg_u32 s{sWAVE}, 0')
            a(f's_cbranch_scc1 {lz}')
        a(f'v_add_u32 v2, {it*256}, v1')
        a(f'v_mul_lo_u32 v3, v2, s{sT1}')
        a('v_lshrrev_b32 v3, 20, v3')
        a('v_mul_u32_u24 v4, 120, v3')
        a('v_sub_u32 v4, v2, v4')
        a('v_min_u32 v4, 111, v4')
        a('v_mul_u32_u24 v5, 4682, v4')
        a('v_lshrrev_b32 v5, 16, v5')
        a('v_mul_u32_u24 v6, 14, v5')
        a('v_sub_u32 v6, v4, v6')
        a('v_lshl_add_u32 v3, v3, 3, v5')
        a(f'v_mul_u32_u24 v3, {F*2}, v3')
        a('v_lshl_add_u32 v3, v6, 4, v3')
        a(f's_add_u32 m0, s{sT2}, {it*4096}')
        a('s_nop 0')
        a(f'buffer_load_dwordx4 v3, s[{SRD_A}:{SRD_A+3}], s{sT0} offen lds')
        if lz:
            a.label(lz)


def phase_gemm1(a, ws_xn, ws_h, ld='', st='', lds0=0):
    XB = 0 + 16
    ACC = 128
    AF = 184
    AFR = [184, 188, 192, 196, 226, 230, 234]
    a(f's_lshl_b32 s{sT0}, s{sG}, 7')
    a(f's_lshl_b32 s{sT1}, s{sWAVE}, 5')
    a(f's_add_u32 s{sT0}, s{sT0}, s{sT1}')
    a(f's_mul_i32 s{sT0}, s{sT0}, {ROWB}')
    a(f's_add_u32 s{sT0}, s{sT0}, {ws_xn}')
    a(f's_add_u32 s{sT1}, s{sT0}, {16*ROWB}')
    a('v_and_b32 v1, 15, v0')
    a('v_lshrrev_b32 v2, 4, v0')
    a(f'v_mul_u32_u24 v3, {ROWB}, v1')
    a('v_lshl_add_u32 v3, v2, 4, v3')
    for ks in range(14):
        for rt in range(2):
            d = XB + (rt * 14 + ks) * 4
            a(f'buffer_load_dwordx4 v[{d}:{d+3}], v3, s[{SRD_WS}:{SRD_WS+3}], s{sT0+rt} offen offset:{64*ks} {ld}')
    a(f'v_mul_u32_u24 v4, {W1_GRP}, v2')
    a('v_lshrrev_b32 v5, 2, v1')
    a('v_mul_u32_u24 v5, 224, v5')
    a('v_and_b32 v6, 3, v1')
    a('v_lshl_add_u32 v5, v6, 3, v5')
    a('v_add_u32 v4, v4, v5')
    if lds0:
        a(f'v_add_u32 v4, {lds0}, v4')
    a(f'v_add_u32 v5, {8*4*W1_GRP}, v4')
    for i in range(56):
        a(f'v_mov_b32 v{ACC+i}, 0')
    def rdA(ft, ks):
        base, off = ('v4', ks * 4 * W1_GRP) if ks < 8 else ('v5', (ks - 8) * 4 * W1_GRP)
        r = AFR[ft]
        a(f'ds_read_b64_tr_b16 v[{r}:{r+1}], {base} offset:{off + 32*ft}')
        a(f'ds_read_b64_tr_b16 v[{r+2}:{r+3}], {base} offset:{off + 32*ft + 896}')
    for ft in range(7):
        rdA(ft, 0)
    for ks in range(14):
        a(f's_waitcnt vmcnt({26 - 2*ks})')
        for ft in range(7):
            if ks < 13:
                a('s_waitcnt lgkmcnt(12)')
            else:
                a(f's_waitcnt lgkmcnt({12 - 2*ft})')
            r = AFR[ft]
            for rt in range(2):
                c = ACC + (ft * 2 + rt) * 4
                b = XB + (rt * 14 + ks) * 4
                a(f'v_mfma_f32_16x16x32_bf16 v[{c}:{c+3}], v[{r}:{r+3}], v[{b}:{b+3}], v[{c}:{c+3}]')
            if ks < 13:
                rdA(ft, ks + 1)
    a(f's_lshl_b32 s{sT0}, s{sG}, 2')
    a(f's_add_u32 s{sT0}, s{sT0}, s{sWAVE}')
    a(f's_mul_i32 s{sT0}, s{sT0}, 112')
    a(f's_mul_i32 s{sT1}, s{sJ}, 7')
    a(f's_add_u32 s{sT0}, s{sT0}, s{sT1}')
    a(f's_lshl_b32 s{sT0}, s{sT0}, 10')
    a(f's_add_u32 s{sT0}, s{sT0}, {ws_h}')
    a(f's_add_u32 s{sT1}, s{sT0}, 4096')
    a('v_lshlrev_b32 v3, 4, v0')
    a('s_nop 4')
    for ft in range(7):
        c = ACC + ft * 8
        for i in range(8):
            a(f'v_maximum3_f32 v{c+i}, v{c+i}, 0, 0')
        o = 16 + 4 * ft
        for rt in range(2):
            a(f'v_cvt_pk_bf16_f32 v{o+2*rt}, v{c+4*rt}, v{c+4*rt+1}')
            a(f'v_cvt_pk_bf16_f32 v{o+2*rt+1}, v{c+4*rt+2}, v{c+4*rt+3}')
        a('s_nop 1')
        a(f'v_permlane16_swap_b32 v{o}, v{o+2}')
        a(f'v_permlane16_swap_b32 v{o+1}, v{o+3}')
        a(f'buffer_store_dwordx4 v[{o}:{o+3}], v3, s[{SRD_WS}:{SRD_WS+3}], s{sT0 + ft//4} offen offset:{(ft%4)*1024} {st}')


def load_w2(a, lds0, nbuf_kk=7):
    srd(a, SRD_A, sW2, D * F * 2)
    a(f's_cmp_ge_u32 s{sJ}, 7')
    a(f's_cselect_b32 s{sT0}, 7, 0')
    a(f's_sub_u32 s{sT0}, s{sJ}, s{sT0}')
    a(f's_lshl_b32 s{sT0}, s{sT0}, 7')
    a(f's_mul_i32 s{sT1}, s{sWAVE}, {448*ROWB}')
    a(f's_add_u32 s{sT0}, s{sT0}, s{sT1}')
    a(f's_mul_i32 s{sT2}, s{sWAVE}, {nbuf_kk*2048}')
    a(f's_add_u32 s{sT2}, s{sT2}, {lds0}')
    a('v_lshrrev_b32 v1, 3, v0')
    a(f'v_mul_u32_u24 v1, {ROWB}, v1')
    a('v_and_b32 v2, 7, v0')
    a('v_lshl_add_u32 v1, v2, 4, v1')
    a('v_lshrrev_b32 v2, 5, v0')
    a('v_lshlrev_b32 v2, 10, v2')
    a('v_bfe_u32 v3, v0, 2, 2')
    a('v_lshl_add_u32 v2, v3, 7, v2')
    a('v_bfe_u32 v3, v0, 4, 1')
    a('v_lshl_add_u32 v2, v3, 5, v2')
    a('v_and_b32 v3, 3, v0')
    a('v_lshl_add_u32 v2, v3, 3, v2')
    a(f'v_add_u32 v2, s{sT2}, v2')
    nrounds = 28 // nbuf_kk
    for rd in range(nrounds):
        for i in range(nbuf_kk * 2):
            a(f's_add_u32 m0, s{sT2}, {i*1024}')
            a(f's_add_u32 s{sT3}, s{sT0}, {(rd*nbuf_kk*2 + i)*8*ROWB}')
            a(f'buffer_load_dwordx4 v1, s[{SRD_A}:{SRD_A+3}], s{sT3} offen lds')
        a('s_waitcnt vmcnt(0)')
        for k in range(nbuf_kk):
            kk = rd * nbuf_kk + k
            for ct in range(2):
                r = (kk * 2 + ct) * 4
                a(f'ds_read_b64_tr_b16 a[{r}:{r+1}], v2 offset:{k*2048 + 64*ct}')
                a(f'ds_read_b64_tr_b16 a[{r+2}:{r+3}], v2 offset:{k*2048 + 64*ct + 512}')
        a('s_waitcnt lgkmcnt(0)')


def phase_gemm2(a, ws_h, final, ld='', st='', lds0=0):
    DEPTH = 12
    HB = 16
    ACC = 112
    a(f's_cmp_ge_u32 s{sJ}, 7')
    a(f's_cselect_b32 s{sT0}, 1, 0')
    a(f's_mul_i32 s{sT1}, s{sT0}, 7')
    a(f's_sub_u32 s{sT1}, s{sJ}, s{sT1}')
    a(f's_lshl_b32 s{sT2}, s{sG}, 2')
    a(f's_lshl_b32 s{sT3}, s{sT0}, 1')
    a(f's_add_u32 s{sT2}, s{sT2}, s{sT3}')
    a(f's_mul_i32 s{sT3}, s{sT2}, 112')
    a(f's_mul_i32 s{sT4}, s{sWAVE}, 28')
    a(f's_add_u32 s{sT3}, s{sT3}, s{sT4}')
    a(f's_lshl_b32 s{sT3}, s{sT3}, 10')
    a(f's_add_u32 s{sT3}, s{sT3}, {ws_h}')
    a('v_lshlrev_b32 v3, 4, v0')
    a(f'v_add_u32 v4, {112*1024}, v3')
    def ldh(kk):
        if kk % 4 == 0:
            a(f's_add_u32 s{sT4}, s{sT3}, {kk*1024}')
        sl = kk % DEPTH
        for rt in range(2):
            d = HB + (sl * 2 + rt) * 4
            a(f'buffer_load_dwordx4 v[{d}:{d+3}], v{3+rt}, s[{SRD_WS}:{SRD_WS+3}], s{sT4} offen offset:{(kk%4)*1024} {ld}')
    for kk in range(DEPTH):
        ldh(kk)
    for i in range(64):
        a(f'v_mov_b32 v{ACC+i}, 0')
    for kk in range(28):
        outstanding_after = min(28, kk + DEPTH) - kk - 1
        a(f's_waitcnt vmcnt({2*outstanding_after})')
        sl = kk % DEPTH
        for ct in range(2):
            for rt in range(2):
                c = ACC + (ct * 2 + rt) * 16
                w = (kk * 2 + ct) * 4
                b = HB + (sl * 2 + rt) * 4
                a(f'v_mfma_f32_32x32x16_bf16 v[{c}:{c+15}], a[{w}:{w+3}], v[{b}:{b+3}], v[{c}:{c+15}]')
        if kk + DEPTH < 28:
            ldh(kk + DEPTH)
    a(f's_lshr_b32 s{sT4}, s{sWAVE}, 1')
    a(f's_and_b32 s{sT5}, s{sWAVE}, 1')
    a(f's_add_u32 s{sT2}, s{sT2}, s{sT5}')
    a(f's_lshl_b32 s{sT2}, s{sT2}, 5')
    a(f's_mul_i32 s{sT2}, s{sT2}, {ROWB}')
    a(f's_lshl_b32 s{sT1}, s{sT1}, 7')
    a(f's_add_u32 s{sT2}, s{sT2}, s{sT1}')
    a(f's_lshl_b32 s{sT4}, s{sT4}, 6')
    a(f's_add_u32 s{sT2}, s{sT2}, s{sT4}')
    a('v_and_b32 v5, 31, v0')
    a(f'v_mul_u32_u24 v5, {ROWB}, v5')
    a('v_lshrrev_b32 v6, 5, v0')
    a('v_lshl_add_u32 v5, v6, 4, v5')
    if final:
        a(f's_add_u32 s{sT6}, s{sT2}, {WS_X3}')
        a(f'buffer_load_dwordx4 v[16:19], v5, s[{SRD_WS}:{SRD_WS+3}], s{sT6} offen {ld}')
        a(f'buffer_load_dwordx4 v[20:23], v5, s[{SRD_WS}:{SRD_WS+3}], s{sT6} offen offset:32 {ld}')
    a(f'v_add_u32 v7, {lds0}, v3')
    a('s_nop 7')
    a('s_nop 3')
    done = a.newlabel('g2d')
    labs = [a.newlabel('g2w') for _ in range(4)]
    for w in range(1, 4):
        a(f's_cmp_eq_u32 s{sWAVE}, {w}')
        a(f's_cbranch_scc1 {labs[w]}')
    for w in range(4):
        a.label(labs[w])
        for T in range(4):
            if T == w:
                continue
            sl = (w - T - 1) & 3
            for g in range(4):
                c = ACC + T * 16 + 4 * g
                a(f'ds_write_b128 v7, v[{c}:{c+3}] offset:{(T*3+sl)*4096 + g*1024}')
        if w != 0:
            for i in range(16):
                a(f'v_mov_b32 v{ACC+i}, v{ACC+16*w+i}')
        if w != 3:
            a(f's_branch {done}')
    a.label(done)
    a(f's_mul_i32 s{sT4}, s{sWAVE}, {3*4096}')
    a(f'v_add_u32 v7, s{sT4}, v7')
    a('s_waitcnt lgkmcnt(0)')
    a('s_barrier')
    for sl in range(3):
        for g in range(4):
            d = 128 + sl * 16 + 4 * g
            a(f'ds_read_b128 v[{d}:{d+3}], v7 offset:{sl*4096 + g*1024}')
    for sl in range(3):
        a(f's_waitcnt lgkmcnt({8 - 4*sl})')
        for i in range(0, 16, 2):
            a(f'v_pk_add_f32 v[{ACC+i}:{ACC+i+1}], v[{ACC+i}:{ACC+i+1}], v[{128+sl*16+i}:{129+sl*16+i}]')
    for g in range(4):
        a(f'v_cvt_pk_bf16_f32 v{24+2*g}, v{ACC+4*g}, v{ACC+4*g+1}')
        a(f'v_cvt_pk_bf16_f32 v{25+2*g}, v{ACC+4*g+2}, v{ACC+4*g+3}')
    a('s_nop 1')
    for p in range(2):
        a(f'v_permlane32_swap_b32 v{24+4*p}, v{26+4*p}')
        a(f'v_permlane32_swap_b32 v{25+4*p}, v{27+4*p}')
    if final:
        srd(a, SRD_A, sOUT, NB)
        a('s_waitcnt vmcnt(0)')
        unpack8(a, 24, 32); unpack8(a, 28, 40)
        unpack8(a, 16, 48); unpack8(a, 20, 56)
        for i in range(0, 16, 2):
            a(f'v_pk_add_f32 v[{32+i}:{33+i}], v[{32+i}:{33+i}], v[{48+i}:{49+i}]')
            a(f'v_cvt_pk_bf16_f32 v{24+i//2}, v{32+i}, v{33+i}')
        a(f'buffer_store_dwordx4 v[24:27], v5, s[{SRD_A}:{SRD_A+3}], s{sT2} offen')
        a(f'buffer_store_dwordx4 v[28:31], v5, s[{SRD_A}:{SRD_A+3}], s{sT2} offen offset:32')
    else:
        a(f's_add_u32 s{sT2}, s{sT2}, {WS_OUT1}')
        a(f'buffer_store_dwordx4 v[24:27], v5, s[{SRD_WS}:{SRD_WS+3}], s{sT2} offen {st}')
        a(f'buffer_store_dwordx4 v[28:31], v5, s[{SRD_WS}:{SRD_WS+3}], s{sT2} offen offset:32 {st}')


def kd(name, nv=512, acc=256, ns=96):
    return f"""
.section .rodata,"a"
.p2align 6
.amdhsa_kernel {name}
  .amdhsa_next_free_vgpr {nv}
  .amdhsa_next_free_sgpr {ns}
  .amdhsa_accum_offset {acc}
  .amdhsa_group_segment_fixed_size 0
  .amdhsa_kernarg_size 96
  .amdhsa_user_sgpr_count 2
  .amdhsa_user_sgpr_kernarg_segment_ptr 1
  .amdhsa_system_sgpr_workgroup_id_x 1
.end_amdhsa_kernel
.text
"""


def kernel(a, name, nwg, body):
    a.L.append(f'.globl {name}\n.p2align 8\n.type {name},@function\n{name}:')
    end = a.newlabel('end')
    prologue(a, nwg, end)
    body(a, end)
    a.label(end)
    a('s_endpgm')


def gen_multi():
    a = Asm()
    launches = []
    kds = ''

    def add(name, nwg, lds, body, nv=256):
        nonlocal kds
        kernel(a, name, nwg, body)
        kds += kd(name, nv=nv, acc=256)
        launches.append((name, nwg, lds))

    add('kv_kernel', 256, 0, lambda a, e: phase_kv(a))
    add('conv_kernel', 224, 2 * C_SLOT, lambda a, e: phase_conv(a))

    def ln1(a, e):
        ln_setup(a); phase_ln1_pre(a); gather_y(a); phase_ln1_post(a, save_x1=True)
    add('lna_kernel', 256, 8192, ln1)

    def g1(xn, h):
        def f(a, e):
            load_w1(a)
            a('s_waitcnt vmcnt(0)')
            a('s_barrier')
            phase_gemm1(a, xn, h)
        return f
    add('ga_kernel', 256, W1_BYTES, g1(WS_XN1, WS_H1))

    def g2(h, final):
        def f(a, e):
            a(f's_cmp_ge_u32 s{sJ}, 14')
            a(f's_cbranch_scc1 {e}')
            load_w2(a, 0)
            a('s_barrier')
            phase_gemm2(a, h, final)
        return f
    add('gb_kernel', 256, 57344, g2(WS_H1, False), nv=512)

    def ln2k(a, e):
        ln_setup(a)
        gather_y(a)
        a(f's_mov_b32 s{sT0}, {WS_X1}')
        a(f'buffer_load_dwordx4 v[4:7], v{vROW}, s[{SRD_WS}:{SRD_WS+3}], s{sT0} offen')
        a(f'buffer_load_dwordx4 v[8:11], v{vROW}, s[{SRD_WS}:{SRD_WS+3}], s{sT0} offen offset:{ROWB}')
        a('s_waitcnt vmcnt(0)')
        unpack8(a, 4, vX0); unpack8(a, 8, vX1)
        phase_ln2(a)
    add('lnb_kernel', 256, 8192, ln2k)
    add('gc_kernel', 256, W1_BYTES, g1(WS_XN3, WS_H2))
    add('gd_kernel', 256, 57344, g2(WS_H2, True), nv=512)
    head = HEADER
    for (n, g, l) in launches:
        head += f'; @launch kernel={n} grid=({g},1,1) block=(256,1,1) lds={l}\n'
    return head + '.amdgcn_target "amdgcn-amd-amdhsa--gfx950"\n.text\n' + a.text() + kds


if __name__ == '__main__':
    mode = sys.argv[1] if len(sys.argv) > 1 else 'multi'
    out = sys.argv[2] if len(sys.argv) > 2 else f'cdna_kernels/{NAME}.s'
    if mode == 'multi':
        txt = gen_multi()
    open(out, 'w').write(txt)
    print('wrote', out, len(txt))
```

```python
import sys

NAME = 'interleave_layers__ssm_conv_h3__dense_activation_relu__prompt'
S, D, F = 2048, 448, 1792
ROWB = D * 2
NB = S * ROWB

WS_KVR = 0x000000
WS_YT = 0x200000
WS_X1 = 0x400000
WS_XN1 = 0x600000
WS_XN3 = 0x800000
WS_X3 = 0xA00000
WS_OUT1 = 0xC00000
WS_H1 = 0x1000000
WS_H2 = 0x1800000
WS_FLAG = 0x2000000
WS_SIZE = 0x2100000

HEADER = """; Kernarg layout for this problem (96 bytes, ptrs only, base s[0:1]):
"""


class Asm:
    def __init__(self):
        self.L = []
        self.uid = 0

    def __call__(self, s):
        for line in s.strip('\n').split('\n'):
            self.L.append('  ' + line.strip())

    def label(self, name):
        self.L.append(name + ':')

    def newlabel(self, base):
        self.uid += 1
        return f'L_{base}_{self.uid}'

    def text(self):
        return '\n'.join(self.L) + '\n'


sQ, sK, sV, sSH, sSK, sSD, sBX, sW1, sW2, sOUT, sDBG, sWS = 16, 18, 20, 22, 24, 26, 28, 30, 32, 34, 36, 38
SRD_WS, SRD_A, SRD_B, SRD_C = 40, 44, 48, 52
sWAVE = 3
sG = 4
sJ = 5
sT0, sT1, sT2, sT3, sT4, sT5 = 6, 7, 8, 9, 10, 11
sMASKHI = 12
sT6, sT7, sT8 = 13, 14, 15
sC0 = 56


def srd(a, dst, base, nbytes, off_sgpr=None):
    if off_sgpr is None:
        a(f's_mov_b32 s{dst}, s{base}')
        a(f's_mov_b32 s{dst+1}, s{base+1}')
    else:
        a(f's_add_u32 s{dst}, s{base}, s{off_sgpr}')
        a(f's_addc_u32 s{dst+1}, s{base+1}, 0')
    a(f's_mov_b32 s{dst+2}, {nbytes:#x}')
    a(f's_mov_b32 s{dst+3}, 0x20000')


def prologue(a, nwg, end_label):
    a(f's_cmp_ge_u32 s2, {nwg}')
    a(f's_cbranch_scc1 {end_label}')
    a('s_load_dwordx16 s[16:31], s[0:1], 0')
    a('s_load_dwordx8 s[32:39], s[0:1], 64')
    a('v_lshrrev_b32 v1, 6, v0')
    a('v_and_b32 v0, 63, v0')
    a('s_nop 0')
    a(f'v_readfirstlane_b32 s{sWAVE}, v1')
    a(f's_mov_b32 s{sMASKHI}, 0xffff0000')
    a(f's_and_b32 s{sT0}, s2, 7')
    a(f's_lshr_b32 s{sT1}, s2, 3')
    a(f's_lshl_b32 s{sG}, s{sT0}, 1')
    a(f's_lshr_b32 s{sT0}, s{sT1}, 4')
    a(f's_add_u32 s{sG}, s{sG}, s{sT0}')
    a(f's_and_b32 s{sJ}, s{sT1}, 15')
    a('s_waitcnt lgkmcnt(0)')
    srd(a, SRD_WS, sWS, WS_SIZE)


def phase_kv(a, st='', after_loads=None, n_after=0):
    srd(a, SRD_A, sK, NB)
    srd(a, SRD_B, sV, NB)
    srd(a, SRD_C, sSH, D * 8)
    a(f'v_lshl_add_u32 v1, s{sWAVE}, 6, v0')
    a('v_mul_u32_u24 v2, 2341, v1')
    a('v_lshrrev_b32 v2, 16, v2')
    a('v_mul_u32_u24 v3, 28, v2')
    a('v_sub_u32 v3, v1, v3')
    a(f's_lshr_b32 s{sT0}, s2, 3')
    a(f's_and_b32 s{sT1}, s2, 7')
    a(f's_mul_i32 s{sT1}, s{sT1}, 56')
    a(f's_lshl_b32 s{sT2}, s{sT0}, 3')
    a(f'v_add_u32 v4, s{sT2}, v2')
    a(f'v_lshl_add_u32 v5, v3, 1, s{sT1}')
    a(f'v_mul_u32_u24 v6, {8*ROWB}, v4')
    a('v_lshl_add_u32 v6, v5, 1, v6')
    a(f'v_subrev_u32 v7, {3*ROWB}, v6')
    a(f'v_add_u32 v8, {4*ROWB}, v6')
    a('v_lshlrev_b32 v9, 3, v5')
    a('v_lshlrev_b32 v10, 12, v5')
    a('v_lshl_add_u32 v10, v4, 4, v10')
    a('v_cmp_gt_u32 vcc, 224, v1')
    a('v_mov_b32 v11, 0x7ffffff0')
    a('s_nop 0')
    for r in (6, 7, 8, 9, 10):
        a(f'v_cndmask_b32 v{r}, v11, v{r}, vcc')
    for r in range(3):
        a(f'buffer_load_dword v{20+r}, v7, s[{SRD_A}:{SRD_A+3}], 0 offen offset:{r*ROWB}')
    for r in range(4):
        a(f'buffer_load_dword v{23+r}, v6, s[{SRD_A}:{SRD_A+3}], 0 offen offset:{r*ROWB}')
    for r in range(4):
        a(f'buffer_load_dword v{27+r}, v8, s[{SRD_A}:{SRD_A+3}], 0 offen offset:{r*ROWB}')
    a(f'buffer_load_dwordx4 v[40:43], v9, s[{SRD_C}:{SRD_C+3}], 0 offen')
    for r in range(4):
        a(f'buffer_load_dword v{32+r}, v6, s[{SRD_B}:{SRD_B+3}], 0 offen offset:{r*ROWB}')
    for r in range(4):
        a(f'buffer_load_dword v{36+r}, v8, s[{SRD_B}:{SRD_B+3}], 0 offen offset:{r*ROWB}')
    if after_loads:
        after_loads()
    a(f's_waitcnt vmcnt({8 + n_after})')
    for r in range(11):
        a(f'v_lshlrev_b32 v{44+2*r}, 16, v{20+r}')
        a(f'v_and_b32 v{45+2*r}, s{sMASKHI}, v{20+r}')
    a('v_lshlrev_b32 v66, 16, v40'); a('v_lshlrev_b32 v67, 16, v42')
    a(f'v_and_b32 v68, s{sMASKHI}, v40'); a(f'v_and_b32 v69, s{sMASKHI}, v42')
    a('v_lshlrev_b32 v70, 16, v41'); a('v_lshlrev_b32 v71, 16, v43')
    a(f'v_and_b32 v72, s{sMASKHI}, v41'); a(f'v_and_b32 v73, s{sMASKHI}, v43')
    a(f's_waitcnt vmcnt({n_after})')

    def rnd(p):
        a(f'v_cvt_pk_bf16_f32 v{p}, v{p}, v{p+1}')
        a(f'v_and_b32 v{p+1}, s{sMASKHI}, v{p}')
        a(f'v_lshlrev_b32 v{p}, 16, v{p}')
    for i0 in range(0, 8, 2):
        T = {i0: 74, i0 + 1: 82}
        for i in (i0, i0 + 1):
            t = T[i]
            for jj, tap in enumerate((3, 2, 1, 0)):
                kr = 44 + 2 * (i + jj)
                a(f'v_pk_mul_f32 v[{t+2*jj}:{t+2*jj+1}], v[{kr}:{kr+1}], v[{66+2*tap}:{67+2*tap}]')
        for jj in range(4):
            for i in (i0, i0 + 1):
                rnd(T[i] + 2 * jj)
        for jj in range(1, 4):
            for i in (i0, i0 + 1):
                t = T[i]
                a(f'v_pk_add_f32 v[{t}:{t+1}], v[{t}:{t+1}], v[{t+2*jj}:{t+2*jj+1}]')
            for i in (i0, i0 + 1):
                rnd(T[i])
        for i in (i0, i0 + 1):
            t = T[i]
            a(f'v_lshlrev_b32 v{t+2}, 16, v{32+i}')
            a(f'v_and_b32 v{t+3}, s{sMASKHI}, v{32+i}')
        for i in (i0, i0 + 1):
            t = T[i]
            a(f'v_pk_mul_f32 v[{t}:{t+1}], v[{t}:{t+1}], v[{t+2}:{t+3}]')
        for i in (i0, i0 + 1):
            t = T[i]
            a(f'v_cvt_pk_bf16_f32 v{90+i}, v{t}, v{t+1}')
    a(f's_mov_b32 s{sT0}, 0x05040100')
    a(f's_mov_b32 s{sT1}, 0x07060302')
    for w in range(4):
        a(f'v_perm_b32 v{100+w}, v{90+6-2*w}, v{90+7-2*w}, s{sT0}')
        a(f'v_perm_b32 v{104+w}, v{90+6-2*w}, v{90+7-2*w}, s{sT1}')
    a(f's_mov_b32 s{sT2}, {WS_KVR}')
    a(f's_mov_b32 s{sT3}, {WS_KVR + 4096}')
    a(f'buffer_store_dwordx4 v[100:103], v10, s[{SRD_WS}:{SRD_WS+3}], s{sT2} offen {st}')
    a(f'buffer_store_dwordx4 v[104:107], v10, s[{SRD_WS}:{SRD_WS+3}], s{sT3} offen {st}')


HC_OFF = [0, 1, 5, 9, 13, 5, 9, 13]
HC_BASE = [r * 4352 + 16 * HC_OFF[r] for r in range(8)]
C_KV = 35072
C_SLOT = 35072 + 33 * 144 + 112
assert C_SLOT % 256 == 0
C_RED = 0
C_YS = 8192


def phase_conv(a, ld='', st='', lds0=0, sPAIR=2, hooks=None, wait_kv=None):
    a(f's_lshr_b32 s{sT0}, s{sWAVE}, 1')
    a(f's_and_b32 s{sT1}, s{sWAVE}, 1')
    hooks = hooks or {}
    a(f's_lshl_b32 s{sT2}, s{sPAIR}, 1')
    a(f's_add_u32 s{sT2}, s{sT2}, s{sT0}')
    a(f's_lshl_b32 s{sT3}, s{sT2}, 12')
    srd(a, SRD_A, sSK, 4096, sT3)
    srd(a, SRD_B, sSD, D * 2)
    a(f's_mul_i32 s{sT4}, s{sT0}, {C_SLOT}')
    if lds0:
        a(f's_add_u32 s{sT4}, s{sT4}, {lds0}')
    a(f'v_lshl_add_u32 v1, s{sT1}, 6, v0')
    a('v_lshlrev_b32 v2, 5, v1')
    a('v_subrev_u32 v3, 16, v2')
    a(f's_add_u32 s{sT5}, s{sT3}, {WS_KVR}')
    a(f'buffer_load_dwordx4 v[20:23], v3, s[{SRD_A}:{SRD_A+3}], 0 offen')
    a(f'buffer_load_dwordx4 v[24:27], v2, s[{SRD_A}:{SRD_A+3}], 0 offen')
    a(f'buffer_load_dwordx4 v[28:31], v2, s[{SRD_A}:{SRD_A+3}], 0 offen offset:16')
    a(f's_lshl_b32 s{sT6}, s{sT2}, 1')
    a(f'v_mov_b32 v4, s{sT6}')
    a(f'buffer_load_ushort v5, v4, s[{SRD_B}:{SRD_B+3}], 0 offen')
    for i in range(4):
        a(f'v_mov_b32 v{40+i}, 0')
    a('v_lshrrev_b32 v6, 3, v0')
    emit_hcbase(a, 'v6', 'v7', 'v8')
    a('v_and_b32 v8, 7, v0')
    a('v_lshl_add_u32 v7, v8, 4, v7')
    a(f'v_add_u32 v7, s{sT4}, v7')
    a(f'v_lshl_add_u32 v9, v8, 4, s{sT4}')
    lz = a.newlabel('noz')
    a(f's_cmp_lg_u32 s{sT1}, 0')
    a(f's_cbranch_scc1 {lz}')
    a('ds_write_b128 v7, v[40:43]')
    a(f'ds_write_b128 v9, v[40:43] offset:{C_KV}')
    a.label(lz)
    a(f'v_add_u32 v10, s{sT4}, v2')
    a('v_lshrrev_b32 v11, 2, v1')
    a('v_mul_u32_u24 v11, 144, v11')
    a('v_and_b32 v12, 3, v1')
    a('v_lshl_add_u32 v11, v12, 5, v11')
    a(f'v_add_u32 v11, s{sT4}, v11')
    a('s_waitcnt vmcnt(0)')
    for i in range(10):
        a(f'v_mov_b32 v{44+i}, v{21+i}')
    for i in range(11):
        a(f'v_alignbit_b32 v{54+i}, v{21+i}, v{20+i}, 16')
    for i in range(10):
        a(f'v_alignbit_b32 v{66+i}, v{22+i}, v{21+i}, 16')
    src = {0: 20, 2: 44, 4: 22, 6: 46, 1: 54, 3: 66, 5: 56, 7: 68}
    for r in range(8):
        s = src[r]
        a(f'ds_write_b128 v10, v[{s}:{s+3}] offset:{HC_BASE[r]+112}')
        a(f'ds_write_b128 v10, v[{s+4}:{s+7}] offset:{HC_BASE[r]+128}')
    a(f'ds_write_b128 v10, v[28:31] offset:{HC_BASE[0]+144}')
    if wait_kv:
        wait_kv()
    a(f'buffer_load_dwordx4 v[32:35], v2, s[{SRD_WS}:{SRD_WS+3}], s{sT5} offen {ld}')
    a(f'buffer_load_dwordx4 v[36:39], v2, s[{SRD_WS}:{SRD_WS+3}], s{sT5} offen offset:16 {ld}')
    a('s_waitcnt vmcnt(0)')
    a(f'ds_write_b128 v11, v[32:35] offset:{C_KV+144}')
    a(f'ds_write_b128 v11, v[36:39] offset:{C_KV+160}')
    a('v_lshlrev_b32 v5, 16, v5')
    a('v_and_b32 v6, 31, v0')
    a('v_lshrrev_b32 v7, 5, v0')
    a('v_add_u32 v8, 1, v6')
    a('v_and_b32 v9, 7, v8')
    emit_hcbase(a, 'v9', 'v12', 'v13')
    a('v_lshrrev_b32 v8, 3, v8')
    a('v_sub_u32 v8, v8, v7')
    a('v_lshl_add_u32 v12, v8, 4, v12')
    a(f's_lshl_b32 s{sT6}, s{sT1}, 11')
    a(f's_add_u32 s{sT6}, s{sT6}, s{sT4}')
    a(f's_add_u32 s{sT6}, s{sT6}, {112-96}')
    a(f'v_add_u32 v12, s{sT6}, v12')
    a(f'v_lshl_add_u32 v13, v7, 4, s{sT4}')
    a(f'v_add_u32 v13, {C_KV}, v13')
    a(f's_lshl_b32 s{sT6}, s{sT1}, 4')
    a(f'v_subrev_u32 v14, s{sT6}, v6')
    a('v_add_u32 v14, 1, v14')
    a('v_mul_i32_i24 v14, 144, v14')
    a('v_add_u32 v14, v14, v13')
    for i in range(32):
        a(f'v_mov_b32 v{64+i}, 0')
    a('s_waitcnt lgkmcnt(0)')
    a('s_barrier')
    AP = [96, 104, 112]
    AZ = [120, 128]
    BB = [136, 152]
    def rdA(dst, ci, delta):
        a(f'ds_read_b128 v[{dst}:{dst+3}], v12 offset:{128*ci + 2*delta + 96}')
    def loads(ci):
        a('v_max_i32 v15, v14, v13')
        a('v_subrev_u32 v14, 144, v14')
        b = BB[ci % 2]
        a(f'ds_read_b128 v[{b}:{b+3}], v15')
        rdA(AP[ci % 3], ci, 32)
        rdA(AZ[ci % 2], ci, 0)
        a(f'ds_read_b128 v[{b+4}:{b+7}], v15 offset:32')
        rdA(AP[ci % 3] + 4, ci, 16)
        rdA(AZ[ci % 2] + 4, ci, -16)
        a(f'ds_read_b128 v[{b+8}:{b+11}], v15 offset:64')
        a(f'ds_read_b128 v[{b+12}:{b+15}], v15 offset:96')
    rdA(AP[2], 0, -32)
    rdA(AP[2] + 4, 0, -48)
    loads(0)
    def mf(acc, A, B):
        a(f'v_mfma_f32_32x32x16_bf16 v[{acc}:{acc+15}], v[{A}:{A+3}], v[{B}:{B+3}], v[{acc}:{acc+15}]')
    for ci in range(16):
        if ci in hooks:
            hooks[ci]()
        if ci + 1 < 16:
            loads(ci + 1)
            a('s_waitcnt lgkmcnt(8)')
        else:
            a('s_waitcnt lgkmcnt(0)')
        p, pp, z, b = AP[ci % 3], AP[(ci + 2) % 3], AZ[ci % 2], BB[ci % 2]
        mf(80, p, b); mf(64, z, b)
        mf(80, p + 4, b + 4); mf(64, z + 4, b + 4)
        mf(80, z, b + 8); mf(64, pp, b + 8)
        mf(80, z + 4, b + 12); mf(64, pp + 4, b + 12)
    a('s_barrier')
    a(f's_lshl_b32 s{sT6}, s{sT1}, 12')
    a(f's_add_u32 s{sT6}, s{sT6}, s{sT4}')
    a(f'v_lshl_add_u32 v16, v0, 4, s{sT6}')
    a(f's_xor_b32 s{sT7}, s{sT1}, 1')
    a(f's_lshl_b32 s{sT7}, s{sT7}, 12')
    a(f's_add_u32 s{sT7}, s{sT7}, s{sT4}')
    a(f'v_lshl_add_u32 v17, v0, 4, s{sT7}')
    a('s_nop 7')
    l1, l2 = a.newlabel('cx'), a.newlabel('cy')
    a(f's_cmp_lg_u32 s{sT1}, 0')
    a(f's_cbranch_scc1 {l1}')
    for g in range(4):
        a(f'ds_write_b128 v16, v[{80+4*g}:{83+4*g}] offset:{C_RED+1024*g}')
    a(f's_branch {l2}')
    a.label(l1)
    for g in range(4):
        a(f'ds_write_b128 v16, v[{64+4*g}:{67+4*g}] offset:{C_RED+1024*g}')
    for i in range(16):
        a(f'v_mov_b32 v{64+i}, v{80+i}')
    a.label(l2)
    a('v_mul_u32_u24 v18, 144, v6')
    a('v_xor_b32 v19, 1, v7')
    a('v_lshl_add_u32 v18, v19, 3, v18')
    a(f's_lshl_b32 s{sT6}, s{sT1}, 6')
    a(f's_add_u32 s{sT6}, s{sT6}, s{sT4}')
    a(f'v_add_u32 v18, s{sT6}, v18')
    for g in range(4):
        a(f'ds_read_b64 v[{96+2*g}:{97+2*g}], v18 offset:{C_KV+144+16*g}')
    a('s_waitcnt lgkmcnt(0)')
    a('s_barrier')
    for g in range(4):
        a(f'ds_read_b128 v[{80+4*g}:{83+4*g}], v17 offset:{C_RED+1024*g}')
    a('v_mul_u32_u24 v18, 144, v6')
    a('v_lshl_add_u32 v18, v7, 3, v18')
    a(f'v_add_u32 v18, s{sT6}, v18')
    for g in range(4):
        w0, w1 = 96 + 2 * g, 97 + 2 * g
        t = 104 + 4 * g
        a(f'v_and_b32 v{t}, s{sMASKHI}, v{w1}')
        a(f'v_lshlrev_b32 v{t+1}, 16, v{w1}')
        a(f'v_and_b32 v{t+2}, s{sMASKHI}, v{w0}')
        a(f'v_lshlrev_b32 v{t+3}, 16, v{w0}')
        for e in range(4):
            a(f'v_mul_f32 v{t+e}, v5, v{t+e}')
        for e in (0, 2):
            a(f'v_cvt_pk_bf16_f32 v{t+e}, v{t+e}, v{t+e+1}')
            a(f'v_and_b32 v{t+e+1}, s{sMASKHI}, v{t+e}')
            a(f'v_lshlrev_b32 v{t+e}, 16, v{t+e}')
    a('s_waitcnt lgkmcnt(0)')
    for i in range(0, 16, 2):
        a(f'v_pk_add_f32 v[{64+i}:{65+i}], v[{64+i}:{65+i}], v[{80+i}:{81+i}]')
        a(f'v_cvt_pk_bf16_f32 v{64+i}, v{64+i}, v{65+i}')
        a(f'v_and_b32 v{65+i}, s{sMASKHI}, v{64+i}')
        a(f'v_lshlrev_b32 v{64+i}, 16, v{64+i}')
        a(f'v_pk_add_f32 v[{64+i}:{65+i}], v[{64+i}:{65+i}], v[{104+i}:{105+i}]')
        a(f'v_cvt_pk_bf16_f32 v{80+i//2}, v{64+i}, v{65+i}')
    for g in range(4):
        a(f'ds_write_b64 v18, v[{80+2*g}:{81+2*g}] offset:{C_YS+16*g}')
    a('s_waitcnt lgkmcnt(0)')
    a('s_barrier')
    a(f'ds_read_b128 v[20:23], v11 offset:{C_YS}')
    a(f'ds_read_b128 v[24:27], v11 offset:{C_YS+16}')
    a(f's_add_u32 s{sT5}, s{sT3}, {WS_YT}')
    a('s_waitcnt lgkmcnt(0)')
    a(f'buffer_store_dwordx4 v[20:23], v2, s[{SRD_WS}:{SRD_WS+3}], s{sT5} offen {st}')
    a(f'buffer_store_dwordx4 v[24:27], v2, s[{SRD_WS}:{SRD_WS+3}], s{sT5} offen offset:16 {st}')


def emit_hcbase(a, r, dst, tmp):
    a(f'v_subrev_u32 {tmp}, 1, {r}')
    a(f'v_subrev_u32 {dst}, 4, {r}')
    a(f'v_cmp_lt_u32 vcc, 4, {r}')
    a('s_nop 1')
    a(f'v_cndmask_b32 {tmp}, {tmp}, {dst}, vcc')
    a(f'v_lshlrev_b32 {tmp}, 6, {tmp}')
    a(f'v_add_u32 {tmp}, 16, {tmp}')
    a(f'v_cmp_eq_u32 vcc, 0, {r}')
    a('s_nop 1')
    a(f'v_cndmask_b32 {tmp}, {tmp}, 0, vcc')
    a(f'v_mul_u32_u24 {dst}, 4352, {r}')
    a(f'v_add_u32 {dst}, {dst}, {tmp}')


def wave_sum2(a, va, vb, sa, sb):
    steps = ['quad_perm:[1,0,3,2] row_mask:0xf bank_mask:0xf', 'quad_perm:[2,3,0,1] row_mask:0xf bank_mask:0xf',
             'row_half_mirror row_mask:0xf bank_mask:0xf', 'row_mirror row_mask:0xf bank_mask:0xf',
             'row_bcast:15 row_mask:0xa bank_mask:0xf', 'row_bcast:31 row_mask:0xc bank_mask:0xf']
    a('s_nop 1')
    for st in steps:
        a(f'v_add_f32_dpp v{va}, v{va}, v{va} {st}')
        a(f'v_add_f32_dpp v{vb}, v{vb}, v{vb} {st}')
        a('s_nop 0')
    a(f'v_readlane_b32 s{sa}, v{va}, 63')
    a(f'v_readlane_b32 s{sb}, v{vb}, 63')


def ln2(a, X, O, T, valid):
    s = sC0 + 2
    for r in range(2):
        x = X[r]
        a(f'v_pk_add_f32 v[{T+4*r}:{T+4*r+1}], v[{x}:{x+1}], v[{x+2}:{x+3}]')
        a(f'v_pk_add_f32 v[{T+4*r+2}:{T+4*r+3}], v[{x+4}:{x+5}], v[{x+6}:{x+7}]')
    for r in range(2):
        a(f'v_pk_add_f32 v[{T+4*r}:{T+4*r+1}], v[{T+4*r}:{T+4*r+1}], v[{T+4*r+2}:{T+4*r+3}]')
    for r in range(2):
        a(f'v_add_f32 v{T+4*r}, v{T+4*r}, v{T+4*r+1}')
    wave_sum2(a, T, T + 4, s, s + 1)
    a(f's_mov_b32 s{s+2}, {f32bits(1.0/448):#x}')
    a('s_nop 0')
    for r in range(2):
        a(f'v_mov_b32 v{T+8+r}, s{s+r}')
    for r in range(2):
        a(f'v_mul_f32 v{T+8+r}, s{s+2}, v{T+8+r}')
    for r in range(2):
        x = X[r]
        for e in range(8):
            a(f'v_sub_f32 v{O[r]+e}, v{x+e}, v{T+8+r}')
        a(f'v_mul_f32 v{T+4*r}, v{O[r]}, v{O[r]}')
        for e in range(1, 8):
            a(f'v_fmac_f32 v{T+4*r}, v{O[r]+e}, v{O[r]+e}')
        a(f'v_mul_f32 v{T+4*r}, v{valid}, v{T+4*r}')
    wave_sum2(a, T, T + 4, s, s + 1)
    a(f'v_cvt_pk_bf16_f32 v{T+8}, v{T+8}, v{T+9}')
    a(f'v_and_b32 v{T+9}, s{sMASKHI}, v{T+8}')
    a(f'v_lshlrev_b32 v{T+8}, 16, v{T+8}')
    for r in range(2):
        a(f'v_mov_b32 v{T+10+r}, s{s+r}')
    for r in range(2):
        a(f'v_mul_f32 v{T+10+r}, s{s+2}, v{T+10+r}')
    def rnd(p):
        a(f'v_cvt_pk_bf16_f32 v{p}, v{p}, v{p+1}')
        a(f'v_and_b32 v{p+1}, s{sMASKHI}, v{p}')
        a(f'v_lshlrev_b32 v{p}, 16, v{p}')
    rnd(T + 10)
    for r in range(2):
        a(f'v_add_f32 v{T+10+r}, {f32bits(1e-5):#x}, v{T+10+r}')
    rnd(T + 10)
    for r in range(2):
        a(f'v_sqrt_f32 v{T+10+r}, v{T+10+r}')
    a('s_nop 0')
    rnd(T + 10)
    for r in range(2):
        a(f'v_rcp_f32 v{T+r}, v{T+10+r}')
    a('s_nop 0')
    for r in range(2):
        a(f'v_fma_f32 v{T+2+r}, -v{T+10+r}, v{T+r}, 1.0')
    for r in range(2):
        a(f'v_fmac_f32 v{T+r}, v{T+2+r}, v{T+r}')
    for r in range(2):
        x, o = X[r], O[r]
        for e in range(8):
            a(f'v_sub_f32 v{o+e}, v{x+e}, v{T+8+r}')
        for e in range(0, 8, 2):
            rnd(o + e)
        for e in range(0, 8, 2):
            for k in (0, 1):
                a(f'v_mul_f32 v{T+4+k}, v{o+e+k}, v{T+r}')
            for k in (0, 1):
                a(f'v_fma_f32 v{T+6+k}, -v{T+4+k}, v{T+10+r}, v{o+e+k}')
            for k in (0, 1):
                a(f'v_fma_f32 v{o+e+k}, v{T+6+k}, v{T+r}, v{T+4+k}')
            rnd(o + e)


def f32bits(x):
    import struct
    return struct.unpack('<I', struct.pack('<f', x))[0]


def unpack8(a, src, dst):
    for i in range(4):
        a(f'v_lshlrev_b32 v{dst+2*i}, 16, v{src+i}')
        a(f'v_and_b32 v{dst+2*i+1}, s{sMASKHI}, v{src+i}')


def pack8(a, src, dst):
    for i in range(4):
        a(f'v_cvt_pk_bf16_f32 v{dst+i}, v{src+2*i}, v{src+2*i+1}')


def gate2(a, X, N, Y, T):
    for r in range(2):
        for e in range(8):
            if r == 0:
                a(f'v_lshlrev_b32 v{T+e}, 16, v{Y+e}')
            else:
                a(f'v_and_b32 v{T+e}, s{sMASKHI}, v{Y+e}')
        for e in range(0, 8, 2):
            n, x = N[r] + e, X[r] + e
            a(f'v_pk_mul_f32 v[{n}:{n+1}], v[{n}:{n+1}], v[{T+e}:{T+e+1}]')
            a(f'v_cvt_pk_bf16_f32 v{n}, v{n}, v{n+1}')
            a(f'v_and_b32 v{n+1}, s{sMASKHI}, v{n}')
            a(f'v_lshlrev_b32 v{n}, 16, v{n}')
            a(f'v_pk_add_f32 v[{x}:{x+1}], v[{x}:{x+1}], v[{n}:{n+1}]')
            a(f'v_cvt_pk_bf16_f32 v{x}, v{x}, v{x+1}')
            a(f'v_and_b32 v{x+1}, s{sMASKHI}, v{x}')
            a(f'v_lshlrev_b32 v{x}, 16, v{x}')


vROW = 200
vVALID = 201
vY = 202
vX0, vX1 = 210, 218


def ln_setup(a):
    a(f's_lshl_b32 s{sT0}, s{sG}, 7')
    a(f's_lshl_b32 s{sT1}, s{sJ}, 3')
    a(f's_add_u32 s{sT0}, s{sT0}, s{sT1}')
    a(f's_lshl_b32 s{sT1}, s{sWAVE}, 1')
    a(f's_add_u32 s{sT1}, s{sT1}, s{sT0}')
    a(f's_mul_i32 s{sT1}, s{sT1}, {ROWB}')
    a(f'v_lshl_add_u32 v{vROW}, v0, 4, s{sT1}')
    a('v_cmp_gt_u32 vcc, 56, v0')
    a(f'v_mov_b32 v1, 0x7ffffff0')
    a('s_nop 0')
    a(f'v_cndmask_b32 v{vROW}, v1, v{vROW}, vcc')
    a(f'v_cndmask_b32 v{vVALID}, 0, 1.0, vcc')


def gather_y(a, ld='', lds0=0):
    a(f's_lshl_b32 s{sT0}, s{sG}, 7')
    a(f's_lshl_b32 s{sT1}, s{sJ}, 3')
    a(f's_add_u32 s{sT0}, s{sT0}, s{sT1}')
    a(f's_lshl_b32 s{sT0}, s{sT0}, 1')
    a(f's_add_u32 s{sT0}, s{sT0}, {WS_YT}')
    a(f's_add_u32 s{sT1}, s{sT0}, {256*4096}')
    a(f'v_lshl_add_u32 v1, s{sWAVE}, 6, v0')
    a('v_lshlrev_b32 v2, 12, v1')
    a(f'buffer_load_dwordx4 v[4:7], v2, s[{SRD_WS}:{SRD_WS+3}], s{sT0} offen {ld}')
    lz = a.newlabel('gy')
    a(f's_cmp_eq_u32 s{sWAVE}, 3')
    a(f's_cbranch_scc1 {lz}')
    a(f'buffer_load_dwordx4 v[8:11], v2, s[{SRD_WS}:{SRD_WS+3}], s{sT1} offen {ld}')
    a.label(lz)
    a('v_lshlrev_b32 v3, 2, v1')
    a(f'v_add_u32 v3, {lds0}, v3')
    a('s_waitcnt vmcnt(0)')
    for w in range(4):
        a(f'ds_write_b32 v3, v{4+w} offset:{w*1792}')
    lz = a.newlabel('gy')
    a(f's_cbranch_scc1 {lz}')
    for w in range(4):
        a(f'ds_write_b32 v3, v{8+w} offset:{w*1792 + 1024}')
    a.label(lz)
    a(f's_mul_i32 s{sT0}, s{sWAVE}, 1792')
    a(f's_add_u32 s{sT0}, s{sT0}, {lds0}')
    a('v_min_u32 v3, 55, v0')
    a(f'v_lshl_add_u32 v3, v3, 5, s{sT0}')
    a('s_waitcnt lgkmcnt(0)')
    a('s_barrier')
    a(f'ds_read_b128 v[{vY}:{vY+3}], v3')
    a(f'ds_read_b128 v[{vY+4}:{vY+7}], v3 offset:16')
    a('v_cmp_gt_u32 vcc, 56, v0')
    a('s_waitcnt lgkmcnt(0)')
    for e in range(8):
        a(f'v_cndmask_b32 v{vY+e}, 0, v{vY+e}, vcc')


def store_rows(a, X, wsoff, T, st='', srd_=SRD_WS):
    a(f's_mov_b32 s{sT0}, {wsoff}')
    for r in range(2):
        pack8(a, X[r], T + 4 * r)
        a(f'buffer_store_dwordx4 v[{T+4*r}:{T+4*r+3}], v{vROW}, s[{srd_}:{srd_+3}], s{sT0} offen offset:{r*ROWB} {st}')


def phase_ln1_pre(a):
    srd(a, SRD_A, sQ, NB)
    a(f'buffer_load_dwordx4 v[4:7], v{vROW}, s[{SRD_A}:{SRD_A+3}], 0 offen')
    a(f'buffer_load_dwordx4 v[8:11], v{vROW}, s[{SRD_A}:{SRD_A+3}], 0 offen offset:{ROWB}')
    a('s_waitcnt vmcnt(0)')
    unpack8(a, 4, vX0)
    unpack8(a, 8, vX1)
    ln2(a, [vX0, vX1], [226, 234], 20, vVALID)


def phase_ln1_post(a, st='', save_x1=False):
    gate2(a, [vX0, vX1], [226, 234], vY, 40)
    if save_x1:
        store_rows(a, [vX0, vX1], WS_X1, 48, st)
    ln2(a, [vX0, vX1], [226, 234], 20, vVALID)
    store_rows(a, [226, 234], WS_XN1, 56, st)


def phase_ln2(a, ld='', st=''):
    a(f's_mov_b32 s{sT0}, {WS_OUT1}')
    a(f'buffer_load_dwordx4 v[4:7], v{vROW}, s[{SRD_WS}:{SRD_WS+3}], s{sT0} offen {ld}')
    a(f'buffer_load_dwordx4 v[8:11], v{vROW}, s[{SRD_WS}:{SRD_WS+3}], s{sT0} offen offset:{ROWB} {ld}')
    a('s_waitcnt vmcnt(0)')
    unpack8(a, 4, 226)
    unpack8(a, 8, 234)
    for r, (x, o) in enumerate(((vX0, 226), (vX1, 234))):
        for e in range(0, 8, 2):
            a(f'v_pk_add_f32 v[{x+e}:{x+e+1}], v[{x+e}:{x+e+1}], v[{o+e}:{o+e+1}]')
            a(f'v_cvt_pk_bf16_f32 v{x+e}, v{x+e}, v{x+e+1}')
            a(f'v_and_b32 v{x+e+1}, s{sMASKHI}, v{x+e}')
            a(f'v_lshlrev_b32 v{x+e}, 16, v{x+e}')
    ln2(a, [vX0, vX1], [226, 234], 20, vVALID)
    gate2(a, [vX0, vX1], [226, 234], vY, 40)
    store_rows(a, [vX0, vX1], WS_X3, 48, st)
    ln2(a, [vX0, vX1], [226, 234], 20, vVALID)
    store_rows(a, [226, 234], WS_XN3, 56, st)


W1_GRP = 1920
W1_BYTES = 56 * W1_GRP


def load_w1(a, lds0=0):
    srd(a, SRD_A, sW1, D * F * 2)
    a(f's_mul_i32 s{sT0}, s{sJ}, 224')
    a(f'v_lshl_add_u32 v1, s{sWAVE}, 6, v0')
    a(f's_mov_b32 s{sT1}, {(1 << 20) // 120 + 1}')
    a(f's_lshl_b32 s{sT2}, s{sWAVE}, 10')
    if lds0:
        a(f's_add_u32 s{sT2}, s{sT2}, {lds0}')
    for it in range(27):
        last = (it == 26)
        lz = None
        if last:
            lz = a.newlabel('w1')
            a(f's_cmp_lg_u32 s{sWAVE}, 0')
            a(f's_cbranch_scc1 {lz}')
        a(f'v_add_u32 v2, {it*256}, v1')
        a(f'v_mul_lo_u32 v3, v2, s{sT1}')
        a('v_lshrrev_b32 v3, 20, v3')
        a('v_mul_u32_u24 v4, 120, v3')
        a('v_sub_u32 v4, v2, v4')
        a('v_min_u32 v4, 111, v4')
        a('v_mul_u32_u24 v5, 4682, v4')
        a('v_lshrrev_b32 v5, 16, v5')
        a('v_mul_u32_u24 v6, 14, v5')
        a('v_sub_u32 v6, v4, v6')
        a('v_lshl_add_u32 v3, v3, 3, v5')
        a(f'v_mul_u32_u24 v3, {F*2}, v3')
        a('v_lshl_add_u32 v3, v6, 4, v3')
        a(f's_add_u32 m0, s{sT2}, {it*4096}')
        a('s_nop 0')
        a(f'buffer_load_dwordx4 v3, s[{SRD_A}:{SRD_A+3}], s{sT0} offen lds')
        if lz:
            a.label(lz)


def phase_gemm1(a, ws_xn, ws_h, ld='', st='', lds0=0):
    XB = 0 + 16
    ACC = 128
    AF = 184
    AFR = [184, 188, 192, 196, 226, 230, 234]
    a(f's_lshl_b32 s{sT0}, s{sG}, 7')
    a(f's_lshl_b32 s{sT1}, s{sWAVE}, 5')
    a(f's_add_u32 s{sT0}, s{sT0}, s{sT1}')
    a(f's_mul_i32 s{sT0}, s{sT0}, {ROWB}')
    a(f's_add_u32 s{sT0}, s{sT0}, {ws_xn}')
    a(f's_add_u32 s{sT1}, s{sT0}, {16*ROWB}')
    a('v_and_b32 v1, 15, v0')
    a('v_lshrrev_b32 v2, 4, v0')
    a(f'v_mul_u32_u24 v3, {ROWB}, v1')
    a('v_lshl_add_u32 v3, v2, 4, v3')
    for ks in range(14):
        for rt in range(2):
            d = XB + (rt * 14 + ks) * 4
            a(f'buffer_load_dwordx4 v[{d}:{d+3}], v3, s[{SRD_WS}:{SRD_WS+3}], s{sT0+rt} offen offset:{64*ks} {ld}')
    a(f'v_mul_u32_u24 v4, {W1_GRP}, v2')
    a('v_lshrrev_b32 v5, 2, v1')
    a('v_mul_u32_u24 v5, 224, v5')
    a('v_and_b32 v6, 3, v1')
    a('v_lshl_add_u32 v5, v6, 3, v5')
    a('v_add_u32 v4, v4, v5')
    if lds0:
        a(f'v_add_u32 v4, {lds0}, v4')
    a(f'v_add_u32 v5, {8*4*W1_GRP}, v4')
    for i in range(56):
        a(f'v_mov_b32 v{ACC+i}, 0')
    def rdA(ft, ks):
        base, off = ('v4', ks * 4 * W1_GRP) if ks < 8 else ('v5', (ks - 8) * 4 * W1_GRP)
        r = AFR[ft]
        a(f'ds_read_b64_tr_b16 v[{r}:{r+1}], {base} offset:{off + 32*ft}')
        a(f'ds_read_b64_tr_b16 v[{r+2}:{r+3}], {base} offset:{off + 32*ft + 896}')
    for ft in range(7):
        rdA(ft, 0)
    for ks in range(14):
        a(f's_waitcnt vmcnt({26 - 2*ks})')
        for ft in range(7):
            if ks < 13:
                a('s_waitcnt lgkmcnt(12)')
            else:
                a(f's_waitcnt lgkmcnt({12 - 2*ft})')
            r = AFR[ft]
            for rt in range(2):
                c = ACC + (ft * 2 + rt) * 4
                b = XB + (rt * 14 + ks) * 4
                a(f'v_mfma_f32_16x16x32_bf16 v[{c}:{c+3}], v[{r}:{r+3}], v[{b}:{b+3}], v[{c}:{c+3}]')
            if ks < 13:
                rdA(ft, ks + 1)
    a(f's_lshl_b32 s{sT0}, s{sG}, 2')
    a(f's_add_u32 s{sT0}, s{sT0}, s{sWAVE}')
    a(f's_mul_i32 s{sT0}, s{sT0}, 112')
    a(f's_mul_i32 s{sT1}, s{sJ}, 7')
    a(f's_add_u32 s{sT0}, s{sT0}, s{sT1}')
    a(f's_lshl_b32 s{sT0}, s{sT0}, 10')
    a(f's_add_u32 s{sT0}, s{sT0}, {ws_h}')
    a(f's_add_u32 s{sT1}, s{sT0}, 4096')
    a('v_lshlrev_b32 v3, 4, v0')
    a('s_nop 4')
    for ft in range(7):
        c = ACC + ft * 8
        for i in range(8):
            a(f'v_maximum3_f32 v{c+i}, v{c+i}, 0, 0')
        o = 16 + 4 * ft
        for rt in range(2):
            a(f'v_cvt_pk_bf16_f32 v{o+2*rt}, v{c+4*rt}, v{c+4*rt+1}')
            a(f'v_cvt_pk_bf16_f32 v{o+2*rt+1}, v{c+4*rt+2}, v{c+4*rt+3}')
        a('s_nop 1')
        a(f'v_permlane16_swap_b32 v{o}, v{o+2}')
        a(f'v_permlane16_swap_b32 v{o+1}, v{o+3}')
        a(f'buffer_store_dwordx4 v[{o}:{o+3}], v3, s[{SRD_WS}:{SRD_WS+3}], s{sT0 + ft//4} offen offset:{(ft%4)*1024} {st}')


def load_w2(a, lds0, nbuf_kk=7):
    srd(a, SRD_A, sW2, D * F * 2)
    a(f's_cmp_ge_u32 s{sJ}, 7')
    a(f's_cselect_b32 s{sT0}, 7, 0')
    a(f's_sub_u32 s{sT0}, s{sJ}, s{sT0}')
    a(f's_lshl_b32 s{sT0}, s{sT0}, 7')
    a(f's_mul_i32 s{sT1}, s{sWAVE}, {448*ROWB}')
    a(f's_add_u32 s{sT0}, s{sT0}, s{sT1}')
    a(f's_mul_i32 s{sT2}, s{sWAVE}, {nbuf_kk*2048}')
    a(f's_add_u32 s{sT2}, s{sT2}, {lds0}')
    a('v_lshrrev_b32 v1, 3, v0')
    a(f'v_mul_u32_u24 v1, {ROWB}, v1')
    a('v_and_b32 v2, 7, v0')
    a('v_lshl_add_u32 v1, v2, 4, v1')
    a('v_lshrrev_b32 v2, 5, v0')
    a('v_lshlrev_b32 v2, 10, v2')
    a('v_bfe_u32 v3, v0, 2, 2')
    a('v_lshl_add_u32 v2, v3, 7, v2')
    a('v_bfe_u32 v3, v0, 4, 1')
    a('v_lshl_add_u32 v2, v3, 5, v2')
    a('v_and_b32 v3, 3, v0')
    a('v_lshl_add_u32 v2, v3, 3, v2')
    a(f'v_add_u32 v2, s{sT2}, v2')
    nrounds = 28 // nbuf_kk
    for rd in range(nrounds):
        for i in range(nbuf_kk * 2):
            a(f's_add_u32 m0, s{sT2}, {i*1024}')
            a(f's_add_u32 s{sT3}, s{sT0}, {(rd*nbuf_kk*2 + i)*8*ROWB}')
            a(f'buffer_load_dwordx4 v1, s[{SRD_A}:{SRD_A+3}], s{sT3} offen lds')
        a('s_waitcnt vmcnt(0)')
        for k in range(nbuf_kk):
            kk = rd * nbuf_kk + k
            for ct in range(2):
                r = (kk * 2 + ct) * 4
                a(f'ds_read_b64_tr_b16 a[{r}:{r+1}], v2 offset:{k*2048 + 64*ct}')
                a(f'ds_read_b64_tr_b16 a[{r+2}:{r+3}], v2 offset:{k*2048 + 64*ct + 512}')
        a('s_waitcnt lgkmcnt(0)')


def phase_gemm2(a, ws_h, final, ld='', st='', lds0=0):
    DEPTH = 12
    HB = 16
    ACC = 112
    a(f's_cmp_ge_u32 s{sJ}, 7')
    a(f's_cselect_b32 s{sT0}, 1, 0')
    a(f's_mul_i32 s{sT1}, s{sT0}, 7')
    a(f's_sub_u32 s{sT1}, s{sJ}, s{sT1}')
    a(f's_lshl_b32 s{sT2}, s{sG}, 2')
    a(f's_lshl_b32 s{sT3}, s{sT0}, 1')
    a(f's_add_u32 s{sT2}, s{sT2}, s{sT3}')
    a(f's_mul_i32 s{sT3}, s{sT2}, 112')
    a(f's_mul_i32 s{sT4}, s{sWAVE}, 28')
    a(f's_add_u32 s{sT3}, s{sT3}, s{sT4}')
    a(f's_lshl_b32 s{sT3}, s{sT3}, 10')
    a(f's_add_u32 s{sT3}, s{sT3}, {ws_h}')
    a('v_lshlrev_b32 v3, 4, v0')
    a(f'v_add_u32 v4, {112*1024}, v3')
    def ldh(kk):
        if kk % 4 == 0:
            a(f's_add_u32 s{sT4}, s{sT3}, {kk*1024}')
        sl = kk % DEPTH
        for rt in range(2):
            d = HB + (sl * 2 + rt) * 4
            a(f'buffer_load_dwordx4 v[{d}:{d+3}], v{3+rt}, s[{SRD_WS}:{SRD_WS+3}], s{sT4} offen offset:{(kk%4)*1024} {ld}')
    for kk in range(DEPTH):
        ldh(kk)
    for i in range(64):
        a(f'v_mov_b32 v{ACC+i}, 0')
    for kk in range(28):
        outstanding_after = min(28, kk + DEPTH) - kk - 1
        a(f's_waitcnt vmcnt({2*outstanding_after})')
        sl = kk % DEPTH
        for ct in range(2):
            for rt in range(2):
                c = ACC + (ct * 2 + rt) * 16
                w = (kk * 2 + ct) * 4
                b = HB + (sl * 2 + rt) * 4
                a(f'v_mfma_f32_32x32x16_bf16 v[{c}:{c+15}], a[{w}:{w+3}], v[{b}:{b+3}], v[{c}:{c+15}]')
        if kk + DEPTH < 28:
            ldh(kk + DEPTH)
    a(f's_lshr_b32 s{sT4}, s{sWAVE}, 1')
    a(f's_and_b32 s{sT5}, s{sWAVE}, 1')
    a(f's_add_u32 s{sT2}, s{sT2}, s{sT5}')
    a(f's_lshl_b32 s{sT2}, s{sT2}, 5')
    a(f's_mul_i32 s{sT2}, s{sT2}, {ROWB}')
    a(f's_lshl_b32 s{sT1}, s{sT1}, 7')
    a(f's_add_u32 s{sT2}, s{sT2}, s{sT1}')
    a(f's_lshl_b32 s{sT4}, s{sT4}, 6')
    a(f's_add_u32 s{sT2}, s{sT2}, s{sT4}')
    a('v_and_b32 v5, 31, v0')
    a(f'v_mul_u32_u24 v5, {ROWB}, v5')
    a('v_lshrrev_b32 v6, 5, v0')
    a('v_lshl_add_u32 v5, v6, 4, v5')
    if final:
        a(f's_add_u32 s{sT6}, s{sT2}, {WS_X3}')
        a(f'buffer_load_dwordx4 v[16:19], v5, s[{SRD_WS}:{SRD_WS+3}], s{sT6} offen {ld}')
        a(f'buffer_load_dwordx4 v[20:23], v5, s[{SRD_WS}:{SRD_WS+3}], s{sT6} offen offset:32 {ld}')
    a(f'v_add_u32 v7, {lds0}, v3')
    a('s_nop 7')
    a('s_nop 3')
    done = a.newlabel('g2d')
    labs = [a.newlabel('g2w') for _ in range(4)]
    for w in range(1, 4):
        a(f's_cmp_eq_u32 s{sWAVE}, {w}')
        a(f's_cbranch_scc1 {labs[w]}')
    for w in range(4):
        a.label(labs[w])
        for T in range(4):
            if T == w:
                continue
            sl = (w - T - 1) & 3
            for g in range(4):
                c = ACC + T * 16 + 4 * g
                a(f'ds_write_b128 v7, v[{c}:{c+3}] offset:{(T*3+sl)*4096 + g*1024}')
        if w != 0:
            for i in range(16):
                a(f'v_mov_b32 v{ACC+i}, v{ACC+16*w+i}')
        if w != 3:
            a(f's_branch {done}')
    a.label(done)
    a(f's_mul_i32 s{sT4}, s{sWAVE}, {3*4096}')
    a(f'v_add_u32 v7, s{sT4}, v7')
    a('s_waitcnt lgkmcnt(0)')
    a('s_barrier')
    for sl in range(3):
        for g in range(4):
            d = 128 + sl * 16 + 4 * g
            a(f'ds_read_b128 v[{d}:{d+3}], v7 offset:{sl*4096 + g*1024}')
    for sl in range(3):
        a(f's_waitcnt lgkmcnt({8 - 4*sl})')
        for i in range(0, 16, 2):
            a(f'v_pk_add_f32 v[{ACC+i}:{ACC+i+1}], v[{ACC+i}:{ACC+i+1}], v[{128+sl*16+i}:{129+sl*16+i}]')
    for g in range(4):
        a(f'v_cvt_pk_bf16_f32 v{24+2*g}, v{ACC+4*g}, v{ACC+4*g+1}')
        a(f'v_cvt_pk_bf16_f32 v{25+2*g}, v{ACC+4*g+2}, v{ACC+4*g+3}')
    a('s_nop 1')
    for p in range(2):
        a(f'v_permlane32_swap_b32 v{24+4*p}, v{26+4*p}')
        a(f'v_permlane32_swap_b32 v{25+4*p}, v{27+4*p}')
    if final:
        srd(a, SRD_A, sOUT, NB)
        a('s_waitcnt vmcnt(0)')
        unpack8(a, 24, 32); unpack8(a, 28, 40)
        unpack8(a, 16, 48); unpack8(a, 20, 56)
        for i in range(0, 16, 2):
            a(f'v_pk_add_f32 v[{32+i}:{33+i}], v[{32+i}:{33+i}], v[{48+i}:{49+i}]')
            a(f'v_cvt_pk_bf16_f32 v{24+i//2}, v{32+i}, v{33+i}')
        a(f'buffer_store_dwordx4 v[24:27], v5, s[{SRD_A}:{SRD_A+3}], s{sT2} offen')
        a(f'buffer_store_dwordx4 v[28:31], v5, s[{SRD_A}:{SRD_A+3}], s{sT2} offen offset:32')
    else:
        a(f's_add_u32 s{sT2}, s{sT2}, {WS_OUT1}')
        a(f'buffer_store_dwordx4 v[24:27], v5, s[{SRD_WS}:{SRD_WS+3}], s{sT2} offen {st}')
        a(f'buffer_store_dwordx4 v[28:31], v5, s[{SRD_WS}:{SRD_WS+3}], s{sT2} offen offset:32 {st}')


def kd(name, nv=512, acc=256, ns=96):
    return f"""
.section .rodata,"a"
.p2align 6
.amdhsa_kernel {name}
  .amdhsa_next_free_vgpr {nv}
  .amdhsa_next_free_sgpr {ns}
  .amdhsa_accum_offset {acc}
  .amdhsa_group_segment_fixed_size 0
  .amdhsa_kernarg_size 96
  .amdhsa_user_sgpr_count 2
  .amdhsa_user_sgpr_kernarg_segment_ptr 1
  .amdhsa_system_sgpr_workgroup_id_x 1
.end_amdhsa_kernel
.text
"""


def kernel(a, name, nwg, body):
    a.L.append(f'.globl {name}\n.p2align 8\n.type {name},@function\n{name}:')
    end = a.newlabel('end')
    prologue(a, nwg, end)
    body(a, end)
    a.label(end)
    a('s_endpgm')


def gen_multi():
    a = Asm()
    launches = []
    kds = ''

    def add(name, nwg, lds, body, nv=256):
        nonlocal kds
        kernel(a, name, nwg, body)
        kds += kd(name, nv=nv, acc=256)
        launches.append((name, nwg, lds))

    add('kv_kernel', 256, 0, lambda a, e: phase_kv(a))
    add('conv_kernel', 224, 2 * C_SLOT, lambda a, e: phase_conv(a))

    def ln1(a, e):
        ln_setup(a); phase_ln1_pre(a); gather_y(a); phase_ln1_post(a, save_x1=True)
    add('lna_kernel', 256, 8192, ln1)

    def g1(xn, h):
        def f(a, e):
            load_w1(a)
            a('s_waitcnt vmcnt(0)')
            a('s_barrier')
            phase_gemm1(a, xn, h)
        return f
    add('ga_kernel', 256, W1_BYTES, g1(WS_XN1, WS_H1))

    def g2(h, final):
        def f(a, e):
            a(f's_cmp_ge_u32 s{sJ}, 14')
            a(f's_cbranch_scc1 {e}')
            load_w2(a, 0)
            a('s_barrier')
            phase_gemm2(a, h, final)
        return f
    add('gb_kernel', 256, 57344, g2(WS_H1, False), nv=512)

    def ln2k(a, e):
        ln_setup(a)
        gather_y(a)
        a(f's_mov_b32 s{sT0}, {WS_X1}')
        a(f'buffer_load_dwordx4 v[4:7], v{vROW}, s[{SRD_WS}:{SRD_WS+3}], s{sT0} offen')
        a(f'buffer_load_dwordx4 v[8:11], v{vROW}, s[{SRD_WS}:{SRD_WS+3}], s{sT0} offen offset:{ROWB}')
        a('s_waitcnt vmcnt(0)')
        unpack8(a, 4, vX0); unpack8(a, 8, vX1)
        phase_ln2(a)
    add('lnb_kernel', 256, 8192, ln2k)
    add('gc_kernel', 256, W1_BYTES, g1(WS_XN3, WS_H2))
    add('gd_kernel', 256, 57344, g2(WS_H2, True), nv=512)
    head = HEADER
    for (n, g, l) in launches:
        head += f'; @launch kernel={n} grid=({g},1,1) block=(256,1,1) lds={l}\n'
    return head + '.amdgcn_target "amdgcn-amd-amdhsa--gfx950"\n.text\n' + a.text() + kds


SRD_W2, sW2OFF, sW2LDS, sW2T = 64, 68, 69, 70
sFL = 71
SRD_DBG = 72
sP0, sP1 = 76, 77
sPAIR = 61
sSTAMP = 80
vW2S, vW2R, vPO, vPD, vONE, vL0 = 242, 243, 244, 245, 246, 247
L_W2ST = 163840 - 4 * 7 * 2048
L_RED = W1_BYTES
L_YS = L_RED + 49152
LDS_TOTAL = 163840
WS_STAMP = WS_FLAG + 0x8000
POLL_MAX = 400000


class Fused:
    def __init__(self, a, stamps=False, ST='sc1', LD='sc1', STL='sc1'):
        self.a, self.stamps, self.ST, self.LD, self.STL = a, stamps, ST, LD, STL
        self.ns = 0

    def stamp(self):
        if not self.stamps:
            return
        a = self.a
        a('s_memrealtime s[78:79]')
        a('s_waitcnt lgkmcnt(0)')
        a(f's_mov_b32 s{sSTAMP + self.ns}, s78')
        self.ns += 1

    def setup(self):
        a = self.a
        srd(a, SRD_DBG, sDBG, 256)
        a(f's_lshl_b32 s{sFL}, s{sG}, 8')
        a(f's_add_u32 s{sFL}, s{sFL}, {WS_FLAG}')
        a(f's_mul_i32 s{sPAIR}, s{sG}, 14')
        a(f's_add_u32 s{sPAIR}, s{sPAIR}, s{sJ}')
        a(f'v_mov_b32 v{vONE}, 1')
        a(f's_lshl_b32 s{sT0}, s{sJ}, 2')
        a(f's_add_u32 s{sT0}, s{sT0}, s{sWAVE}')
        a(f's_lshl_b32 s{sT0}, s{sT0}, 2')
        a(f'v_mov_b32 v1, 0x7ffffff0')
        a(f'v_mov_b32 v2, s{sT0}')
        a('v_cmp_eq_u32 vcc, 0, v0')
        a(f'v_lshl_add_u32 v3, v0, 12, v2')
        a('s_nop 0')
        a(f'v_cndmask_b32 v{vL0}, v1, v2, vcc')
        a('v_cmp_gt_u32 vcc, 5, v0')
        a('v_mov_b32 v4, 0')
        a('s_nop 0')
        a('v_cndmask_b32 v3, v1, v3, vcc')
        a(f'buffer_store_dword v4, v3, s[{SRD_WS}:{SRD_WS+3}], s{sFL} offen sc1')

    def w2_setup(self):
        a = self.a
        srd(a, SRD_W2, sW2, D * F * 2)
        a(f's_cmp_ge_u32 s{sJ}, 7')
        a(f's_cselect_b32 s{sW2T}, 7, 0')
        a(f's_sub_u32 s{sW2T}, s{sJ}, s{sW2T}')
        a(f's_lshl_b32 s{sW2T}, s{sW2T}, 7')
        a(f's_mul_i32 s{sW2OFF}, s{sWAVE}, {448*ROWB}')
        a(f's_add_u32 s{sW2OFF}, s{sW2OFF}, s{sW2T}')
        a(f's_mul_i32 s{sW2LDS}, s{sWAVE}, {7*2048}')
        a(f's_add_u32 s{sW2LDS}, s{sW2LDS}, {L_W2ST}')
        a(f'v_lshrrev_b32 v{vW2S}, 3, v0')
        a(f'v_mul_u32_u24 v{vW2S}, {ROWB}, v{vW2S}')
        a('v_and_b32 v2, 7, v0')
        a(f'v_lshl_add_u32 v{vW2S}, v2, 4, v{vW2S}')
        a('v_lshrrev_b32 v2, 5, v0')
        a('v_lshlrev_b32 v2, 10, v2')
        a('v_bfe_u32 v3, v0, 2, 2')
        a('v_lshl_add_u32 v2, v3, 7, v2')
        a('v_bfe_u32 v3, v0, 4, 1')
        a('v_lshl_add_u32 v2, v3, 5, v2')
        a('v_and_b32 v3, 3, v0')
        a('v_lshl_add_u32 v2, v3, 3, v2')
        a(f'v_add_u32 v{vW2R}, s{sW2LDS}, v2')

    def w2_issue(self, rd):
        a = self.a
        for i in range(14):
            a(f's_add_u32 m0, s{sW2LDS}, {i*1024}')
            a(f's_add_u32 s{sW2T}, s{sW2OFF}, {(rd*14 + i)*8*ROWB}')
            a(f'buffer_load_dwordx4 v{vW2S}, s[{SRD_W2}:{SRD_W2+3}], s{sW2T} offen lds')

    def w2_collect(self, rd):
        a = self.a
        a('s_waitcnt vmcnt(0)')
        for k in range(7):
            kk = rd * 7 + k
            for ct in range(2):
                r = (kk * 2 + ct) * 4
                a(f'ds_read_b64_tr_b16 a[{r}:{r+1}], v{vW2R} offset:{k*2048 + 64*ct}')
                a(f'ds_read_b64_tr_b16 a[{r+2}:{r+3}], v{vW2R} offset:{k*2048 + 64*ct + 512}')
        a('s_waitcnt lgkmcnt(0)')

    def arrive_dbg(self, val):
        a = self.a
        a('s_waitcnt vmcnt(0)')
        a('s_barrier')
        lz = a.newlabel('arr')
        a(f's_cmp_lg_u32 s{sWAVE}, 0')
        a(f's_cbranch_scc1 {lz}')
        a(f's_and_b32 s{sP0}, s2, 7')
        a(f's_lshl_b32 s{sP0}, s{sP0}, 5')
        a(f's_lshr_b32 s{sP1}, s2, 3')
        a(f's_add_u32 s{sP0}, s{sP0}, s{sP1}')
        a(f'v_mov_b32 v{vPD}, {val}')
        a(f'v_lshlrev_b32 v{vPO}, 12, v0')
        a(f'buffer_store_byte v{vPD}, v{vPO}, s[{SRD_DBG}:{SRD_DBG+3}], s{sP0} offen sc1')
        a.label(lz)

    def poll(self, srd_, soff, check, sleep=1):
        a = self.a
        lp, ld = a.newlabel('poll'), a.newlabel('pdone')
        a(f's_mov_b32 s{sP1}, 0')
        a.label(lp)
        a(f'buffer_load_dword v{vPD}, v{vPO}, s[{srd_}:{srd_+3}], {soff} offen sc1')
        a(f's_add_u32 s{sP1}, s{sP1}, 1')
        a('s_waitcnt vmcnt(0)')
        check()
        a(f's_cmp_ge_u32 s{sP1}, {POLL_MAX}')
        a(f's_cbranch_scc1 {ld}')
        a(f's_cbranch_vccz {ld}')
        if sleep:
            a(f's_sleep {sleep}')
        a(f's_branch {lp}')
        a.label(ld)

    def wait_kv(self):
        a = self.a
        a(f's_mul_i32 s{sP0}, s{sPAIR}, 2341')
        a(f's_lshr_b32 s{sP0}, s{sP0}, 16')
        a(f's_lshl_b32 s{sP0}, s{sP0}, 5')
        a(f'v_and_b32 v{vPO}, 7, v0')
        a(f'v_lshlrev_b32 v{vPO}, 2, v{vPO}')
        def chk():
            a(f'v_lshrrev_b32 v{vPD+3}, 1, v{vPD}')
            a(f'v_or_b32 v{vPD}, v{vPD}, v{vPD+3}')
            a(f'v_and_b32 v{vPD}, 0x01010101, v{vPD}')
            a(f'v_cmp_ne_u32 vcc, 0x01010101, v{vPD}')
        self.poll(SRD_DBG, f's{sP0}', chk)

    def wait_y(self):
        a = self.a
        lz = a.newlabel('wy')
        a(f's_cmp_lg_u32 s{sWAVE}, 0')
        a(f's_cbranch_scc1 {lz}')
        a(f'v_lshlrev_b32 v{vPO}, 2, v0')
        self.poll(SRD_DBG, '0', lambda: a(f'v_cmp_ne_u32 vcc, 0x02020202, v{vPD}'))
        a.label(lz)
        a('s_barrier')

    def flag_set(self, arr):
        a = self.a
        a(f's_add_u32 s{sP0}, s{sFL}, {arr*4096}')
        a('s_waitcnt vmcnt(0)')
        a(f'buffer_store_dword v{vONE}, v{vL0}, s[{SRD_WS}:{SRD_WS+3}], s{sP0} offen {self.STL}')

    def flag_wait(self, arr, setup_off):
        a = self.a
        a(f's_add_u32 s{sP0}, s{sFL}, {arr*4096}')
        setup_off()
        self.poll(SRD_WS, f's{sP0}', lambda: a(f'v_cmp_ne_u32 vcc, 1, v{vPD}'), sleep=0)

    def wait_xn(self, arr):
        a = self.a
        def so():
            a(f'v_and_b32 v{vPO}, 15, v0')
            a(f'v_lshl_add_u32 v{vPO}, s{sWAVE}, 4, v{vPO}')
            a(f'v_lshlrev_b32 v{vPO}, 2, v{vPO}')
        self.flag_wait(arr, so)

    def wait_h(self, arr):
        a = self.a
        def so():
            a(f's_cmp_ge_u32 s{sJ}, 7')
            a(f's_cselect_b32 s{sP1}, 2, 0')
            a(f'v_bfe_u32 v{vPO}, v0, 1, 2')
            a(f'v_lshl_add_u32 v{vPO}, s{sWAVE}, 2, v{vPO}')
            a(f'v_lshl_add_u32 v{vPO}, v{vPO}, 2, s{sP1}')
            a(f'v_and_b32 v{vPD}, 1, v0')
            a(f'v_add_u32 v{vPO}, v{vPO}, v{vPD}')
            a(f'v_lshlrev_b32 v{vPO}, 2, v{vPO}')
        self.flag_wait(arr, so)

    def wait_out(self, arr):
        a = self.a
        def so():
            a(f's_lshr_b32 s{sP1}, s{sJ}, 3')
            a(f's_mul_i32 s{sP1}, s{sP1}, 28')
            a(f's_bfe_u32 s{sT0}, s{sJ}, 0x10002')
            a(f's_add_u32 s{sP1}, s{sP1}, s{sT0}')
            a(f'v_min_u32 v{vPO}, 13, v0')
            a(f'v_lshl_add_u32 v{vPO}, v{vPO}, 1, s{sP1}')
            a(f'v_lshlrev_b32 v{vPO}, 2, v{vPO}')
        self.flag_wait(arr, so)

    def dump_stamps(self):
        if not self.stamps:
            return
        a = self.a
        lz = a.newlabel('ds')
        a(f's_cmp_lg_u32 s{sWAVE}, 0')
        a(f's_cbranch_scc1 {lz}')
        a(f's_lshl_b32 s{sT0}, s2, 6')
        a(f's_add_u32 s{sT0}, s{sT0}, {WS_STAMP}')
        a(f'v_lshlrev_b32 v1, 28, v0')
        a('v_cmp_eq_u32 vcc, 0, v0')
        a('v_mov_b32 v2, 0x7ffffff0')
        a('s_nop 0')
        a('v_cndmask_b32 v1, v2, 0, vcc')
        for i in range(self.ns):
            a(f'v_mov_b32 v3, s{sSTAMP+i}')
            a(f'buffer_store_dword v3, v1, s[{SRD_WS}:{SRD_WS+3}], s{sT0} offen offset:{4*i}')
        a.label(lz)


def gen_fused(stamps=False):
    a = Asm()
    name = NAME + '_kernel'

    def body(a, end):
        f = Fused(a, stamps)
        ST, LD, STL = f.ST, f.LD, f.STL
        f.stamp()
        f.setup()
        ln_setup(a)
        lB, lJoin = a.newlabel('pathB'), a.newlabel('join')
        a(f's_cmp_ge_u32 s{sJ}, 14')
        a(f's_cbranch_scc1 {lB}')
        f.w2_setup()
        phase_kv(a, st=ST, after_loads=lambda: f.w2_issue(0), n_after=14)
        f.arrive_dbg(1)
        f.stamp()
        f.w2_collect(0)
        f.w2_issue(1)
        phase_ln1_pre(a)
        def hk(rd):
            def h():
                f.w2_collect(rd)
                f.w2_issue(rd + 1)
            return h
        def wkv():
            f.wait_kv()
            f.stamp()
        phase_conv(a, ld=LD, st=ST, sPAIR=sPAIR, hooks={0: hk(1), 8: hk(2)}, wait_kv=wkv)
        f.arrive_dbg(2)
        f.stamp()
        f.w2_collect(3)
        a('s_barrier')
        load_w1(a)
        a(f's_branch {lJoin}')
        a.label(lB)
        ns = f.ns
        f.ns = 1
        phase_kv(a, st=ST)
        f.arrive_dbg(2)
        f.stamp(); f.stamp(); f.stamp()
        assert f.ns == ns or not stamps
        phase_ln1_pre(a)
        load_w1(a)
        a.label(lJoin)
        f.wait_y()
        f.stamp()
        gather_y(a, ld=LD, lds0=L_YS)
        phase_ln1_post(a, st=STL)
        f.flag_set(0)
        f.stamp()
        a('s_barrier')
        f.wait_xn(0)
        f.stamp()
        phase_gemm1(a, WS_XN1, WS_H1, ld=LD, st=STL)
        f.flag_set(1)
        f.stamp()
        l2 = a.newlabel('nog2')
        a(f's_cmp_ge_u32 s{sJ}, 14')
        a(f's_cbranch_scc1 {l2}')
        f.wait_h(1)
        f.stamp()
        phase_gemm2(a, WS_H1, False, ld=LD, st=STL, lds0=L_RED)
        f.flag_set(2)
        a.label(l2)
        f.stamp()
        f.wait_out(2)
        f.stamp()
        phase_ln2(a, ld=LD, st=STL)
        f.flag_set(3)
        f.stamp()
        f.wait_xn(3)
        f.stamp()
        phase_gemm1(a, WS_XN3, WS_H2, ld=LD, st=STL)
        f.flag_set(4)
        f.stamp()
        l3 = a.newlabel('nog2')
        a(f's_cmp_ge_u32 s{sJ}, 14')
        a(f's_cbranch_scc1 {l3}')
        f.wait_h(4)
        f.stamp()
        phase_gemm2(a, WS_H2, True, ld=LD, lds0=L_RED)
        a.label(l3)
        a('s_waitcnt vmcnt(0)')
        f.stamp()
        f.dump_stamps()
    kernel(a, name, 256, body)
    head = HEADER + f'; @launch kernel={name} grid=(256,1,1) block=(256,1,1) lds={LDS_TOTAL}\n'
    return head + '.amdgcn_target "amdgcn-amd-amdhsa--gfx950"\n.text\n' + a.text() + kd(name, nv=512, acc=256, ns=96)


if __name__ == '__main__':
    mode = sys.argv[1] if len(sys.argv) > 1 else 'multi'
    out = sys.argv[2] if len(sys.argv) > 2 else f'cdna_kernels/{NAME}.s'
    if mode == 'multi':
        txt = gen_multi()
    elif mode == 'fused':
        txt = gen_fused()
    elif mode == 'fused_stamps':
        txt = gen_fused(stamps=True)
    open(out, 'w').write(txt)
    print('wrote', out, len(txt))
```

```python
import sys, os, struct

NAME = 'interleave_layers__ssm_conv_h3__dense_activation_relu__prompt'
S, D, F = 2048, 448, 1792
ROWB = D * 2
NB = S * ROWB

WS_KVR = 0x000000
WS_YT = 0x200000
WS_XN1 = 0x600000
WS_XN3 = 0x800000
WS_X3 = 0xA00000
WS_OUT1 = 0xC00000
WS_H1 = 0x1000000
WS_H2 = 0x1800000
WS_W1F = 0x2000000
WS_W2F = 0x2200000
WS_FLAG = 0x2400000
WS_F1 = WS_FLAG + 0xA000
WS_F2 = WS_FLAG + 0xB000
WS_F3 = WS_FLAG + 0xC000
WS_F0 = WS_FLAG + 0xD000
WS_STAMP = WS_FLAG + 0x10000
WS_SIZE = 0x2500000
OOB = 0x7ffffff0
LDB = os.environ.get('LDB', '')
PRETOUCH = int(os.environ.get('PRETOUCH', '0'))
HDEPTH = int(os.environ.get('HDEPTH', '6'))
XPRE = int(os.environ.get('XPRE', '5'))

HEADER = """; Kernarg layout for this problem (96 bytes, ptrs only, base s[0:1]):
"""


def f32bits(x):
    return struct.unpack('<I', struct.pack('<f', x))[0]


class Asm:
    def __init__(self):
        self.L = []
        self.uid = 0
        self.stamps = False
        self.names = {}
        self.ns = 0

    def __call__(self, s):
        for line in s.strip('\n').split('\n'):
            self.L.append('  ' + line.strip())

    def label(self, name):
        self.L.append(name + ':')

    def newlabel(self, base):
        self.uid += 1
        return f'L_{base}_{self.uid}'

    def text(self):
        return '\n'.join(self.L) + '\n'

    def stamp(self, name):
        if not self.stamps:
            return
        self('s_memrealtime s[78:79]')
        self('s_waitcnt lgkmcnt(0)')
        if getattr(self, 'lstamp', False):
            self(f's_mul_i32 s79, s95, 12')
            self(f's_add_u32 s79, s79, {self.ns}')
            self(f'v_writelane_b32 v255, s78, s79')
            self.names.setdefault(self.ns + 12, name + '2')
        else:
            self(f'v_writelane_b32 v255, s78, {self.ns}')
        self.names.setdefault(self.ns, name)
        self.ns += 1
        assert self.ns <= 64


sQ, sK, sV, sSH, sSK, sSD, sBX, sW1, sW2, sOUT, sDBG, sWS = 16, 18, 20, 22, 24, 26, 28, 30, 32, 34, 36, 38
SRD_WS, SRD_A, SRD_B, SRD_C = 40, 44, 48, 52
sWAVE, sG, sJ = 3, 4, 5
sT0, sT1, sT2, sT3, sT4, sT5 = 6, 7, 8, 9, 10, 11
sMASKHI = 12
sT6, sT7, sT8 = 13, 14, 15
sL = 56
sPAIR, sFAST, sBYTE = 66, 67, 68
sFL = 71
SRD_DBG = 72
sP0, sP1 = 76, 77
SRD_D, SRD_E = 80, 84
sU0, sU1, sU2, sU3 = 88, 89, 90, 91
sRL0, sRL1, sRL2 = 92, 93, 94
sW2B = 69
sNONCE = 70
sLAYER = 95
sW2W = 60

vROW, vVALID, vY = 200, 201, 202
vX0, vX1 = 210, 218
vN0, vN1 = 226, 234
vPO, vPD, vPT, vONE, vL0, vXNO = 242, 243, 244, 245, 246, 247
vCN = 253

W1_BYTES = 7 * 14 * 1024
L_RED = W1_BYTES
L_YS = L_RED + 49152
L_MISC = L_YS + 7168
LDS_TOTAL = 163840
L_KVT = 100352
POLL_MAX = 400000

WSQ = f's[{SRD_WS}:{SRD_WS+3}]'


def q(n):
    return f's[{n}:{n+3}]'


def srd(a, dst, base, nbytes, off_sgpr=None):
    if off_sgpr is None:
        a(f's_mov_b32 s{dst}, s{base}')
        a(f's_mov_b32 s{dst+1}, s{base+1}')
    else:
        a(f's_add_u32 s{dst}, s{base}, s{off_sgpr}')
        a(f's_addc_u32 s{dst+1}, s{base+1}, 0')
    a(f's_mov_b32 s{dst+2}, {nbytes:#x}')
    a(f's_mov_b32 s{dst+3}, 0x20000')


def rnd(a, p):
    a(f'v_cvt_pk_bf16_f32 v{p}, v{p}, v{p+1}')
    a(f'v_and_b32 v{p+1}, s{sMASKHI}, v{p}')
    a(f'v_lshlrev_b32 v{p}, 16, v{p}')


def unpack8(a, src, dst):
    for i in range(4):
        a(f'v_lshlrev_b32 v{dst+2*i}, 16, v{src+i}')
        a(f'v_and_b32 v{dst+2*i+1}, s{sMASKHI}, v{src+i}')


def pack8(a, src, dst):
    for i in range(4):
        a(f'v_cvt_pk_bf16_f32 v{dst+i}, v{src+2*i}, v{src+2*i+1}')


def stores2(a, emit):
    lf, ld = a.newlabel('fast'), a.newlabel('sdone')
    a(f's_cmp_lg_u32 s{sFAST}, 0')
    a(f's_cbranch_scc1 {lf}')
    emit('sc1')
    a(f's_branch {ld}')
    a.label(lf)
    emit('')
    a.label(ld)


def prologue(a, name, end_label):
    a(f's_cmp_ge_u32 s2, 256')
    a(f's_cbranch_scc1 {end_label}')
    a('s_load_dwordx16 s[16:31], s[0:1], 0')
    a('s_load_dwordx8 s[32:39], s[0:1], 64')
    a('v_lshrrev_b32 v1, 6, v0')
    a('v_and_b32 v0, 63, v0')
    a(f's_getpc_b64 s[{SRD_D}:{SRD_D+1}]')
    a(f'v_readfirstlane_b32 s{sWAVE}, v1')
    a(f's_mov_b32 s{sMASKHI}, 0xffff0000')
    a(f's_and_b32 s{sT0}, s2, 7')
    a(f's_lshr_b32 s{sT1}, s2, 3')
    a(f's_lshl_b32 s{sG}, s{sT0}, 1')
    a(f's_lshr_b32 s{sT0}, s{sT1}, 4')
    a(f's_add_u32 s{sG}, s{sG}, s{sT0}')
    a(f's_and_b32 s{sJ}, s{sT1}, 15')
    a(f's_mov_b32 s{SRD_D+2}, {end_label}-{name}-64')
    a(f's_mov_b32 s{SRD_D+3}, 0x20000')
    a(f's_lshl_b32 s{sT1}, s{sT1}, 2')
    a(f's_add_u32 s{sT1}, s{sT1}, s{sWAVE}')
    a(f's_lshl_b32 s{sT1}, s{sT1}, 10')
    a('v_lshlrev_b32 v2, 4, v0')
    a(f'buffer_load_dword v254, v2, {q(SRD_D)}, s{sT1} offen')
    a(f's_getreg_b32 s{sBYTE}, hwreg(HW_REG_XCC_ID)')
    a(f's_and_b32 s{sBYTE}, s{sBYTE}, 7')
    a(f's_lshl_b32 s{sFL}, s{sG}, 8')
    a(f's_add_u32 s{sFL}, s{sFL}, {WS_FLAG}')
    a(f's_mul_i32 s{sPAIR}, s{sG}, 14')
    a(f's_add_u32 s{sPAIR}, s{sPAIR}, s{sJ}')
    a(f's_lshl_b32 s{sT0}, s{sJ}, 2')
    a(f's_add_u32 s{sT0}, s{sT0}, s{sWAVE}')
    a(f's_lshl_b32 s{sT0}, s{sT0}, 2')
    a(f'v_mov_b32 v1, {OOB:#x}')
    a(f'v_mov_b32 v2, s{sT0}')
    a('v_cmp_eq_u32 vcc, 0, v0')
    a(f's_lshl_b32 s{sT0}, s{sG}, 7')
    a(f'v_cndmask_b32 v{vL0}, v1, v2, vcc')
    a(f's_lshl_b32 s{sT1}, s{sJ}, 3')
    a(f's_add_u32 s{sT0}, s{sT0}, s{sT1}')
    a(f's_lshl_b32 s{sT1}, s{sWAVE}, 1')
    a(f's_add_u32 s{sT1}, s{sT1}, s{sT0}')
    a(f's_mul_i32 s{sT1}, s{sT1}, {ROWB}')
    a('v_cmp_gt_u32 vcc, 56, v0')
    a(f'v_lshl_add_u32 v{vROW}, v0, 4, s{sT1}')
    a('s_nop 0')
    a(f'v_cndmask_b32 v{vROW}, v1, v{vROW}, vcc')
    a(f'v_cndmask_b32 v{vVALID}, 0, 1.0, vcc')
    a(f's_lshl_b32 s{sT2}, s{sG}, 3')
    a(f's_lshr_b32 s{sT3}, s{sJ}, 1')
    a(f's_add_u32 s{sT2}, s{sT2}, s{sT3}')
    a(f's_mul_i32 s{sT2}, s{sT2}, 14336')
    a(f's_and_b32 s{sT3}, s{sJ}, 1')
    a(f's_lshl_b32 s{sT3}, s{sT3}, 7')
    a(f's_add_u32 s{sT2}, s{sT2}, s{sT3}')
    a(f's_lshl_b32 s{sT3}, s{sWAVE}, 5')
    a(f's_add_u32 s{sT2}, s{sT2}, s{sT3}')
    a(f'v_lshl_add_u32 v5, v0, 8, s{sT2}')
    a(f'v_cndmask_b32 v{vXNO}, v1, v5, vcc')
    a('s_waitcnt lgkmcnt(0)')
    srd(a, SRD_WS, sWS, WS_SIZE)
    srd(a, SRD_DBG, sDBG, 256)
    lz = a.newlabel('nn')
    a(f's_or_b32 s{sT0}, s2, s{sWAVE}')
    a(f's_cmp_lg_u32 s{sT0}, 0')
    a(f's_cbranch_scc1 {lz}')
    a('s_memrealtime s[78:79]')
    a(f'v_lshlrev_b32 v{vPO}, 12, v0')
    a('s_waitcnt lgkmcnt(0)')
    a('s_or_b32 s78, s78, 8')
    a('s_and_b32 s78, s78, -8')
    a(f'v_mov_b32 v{vPD}, s78')
    a(f'buffer_store_dword v{vPD}, v{vPO}, {q(SRD_DBG)}, 0 offen sc1')
    a.label(lz)


def code_prefetch(a, name, end_label):
    l = a.newlabel('pc')
    a(f's_getpc_b64 s[{SRD_D}:{SRD_D+1}]')
    a.label(l)
    a(f's_mov_b32 s{SRD_D+2}, {end_label}-{l}')
    a(f's_mov_b32 s{SRD_D+3}, 0x20000')
    a(f's_lshr_b32 s{sT1}, s2, 3')
    a(f's_lshl_b32 s{sT1}, s{sT1}, 2')
    a(f's_add_u32 s{sT1}, s{sT1}, s{sWAVE}')
    a(f's_lshl_b32 s{sT1}, s{sT1}, 10')
    a('v_lshlrev_b32 v2, 4, v0')
    a(f'buffer_load_dword v254, v2, {q(SRD_D)}, s{sT1} offen')


def pretouch(a):
    srd(a, SRD_E, sOUT, NB)
    a(f'v_mul_u32_u24 v12, {WS_SIZE // 64 // 4096}, v0')
    a('v_lshlrev_b32 v12, 12, v12')
    a(f'buffer_load_dword v254, v12, {WSQ}, 0 offen sc1')
    a('v_lshlrev_b32 v12, 15, v0')
    a(f'buffer_load_dword v254, v12, {q(SRD_E)}, 0 offen sc1')


def kv_loads(a):
    srd(a, SRD_A, sK, NB)
    srd(a, SRD_B, sV, NB)
    srd(a, SRD_C, sSH, D * 8)
    a(f'v_lshl_add_u32 v1, s{sWAVE}, 6, v0')
    a('v_mul_u32_u24 v2, 2341, v1')
    a('v_lshrrev_b32 v2, 16, v2')
    a('v_mul_u32_u24 v5, 28, v2')
    a('v_sub_u32 v5, v1, v5')
    a('v_mul_u32_u24 v3, 272, v5')
    a('v_lshl_add_u32 v3, v2, 4, v3')
    a(f'v_add_u32 v3, {L_KVT}, v3')
    a('v_lshrrev_b32 v4, 4, v1')
    a('v_mul_u32_u24 v4, 272, v4')
    a('v_and_b32 v12, 15, v1')
    a('v_lshl_add_u32 v4, v12, 4, v4')
    a(f'v_add_u32 v4, {L_KVT}, v4')
    a(f's_lshr_b32 s{sT0}, s2, 3')
    a(f's_and_b32 s{sT1}, s2, 7')
    a(f's_mul_i32 s{sT1}, s{sT1}, 56')
    a(f's_lshl_b32 s{sT2}, s{sT0}, 3')
    a(f'v_add_u32 v2, s{sT2}, v2')
    a(f'v_lshl_add_u32 v5, v5, 1, s{sT1}')
    a(f'v_mul_u32_u24 v6, {8*ROWB}, v2')
    a('v_lshl_add_u32 v6, v5, 1, v6')
    a(f'v_subrev_u32 v7, {3*ROWB}, v6')
    a(f'v_add_u32 v8, {4*ROWB}, v6')
    a('v_lshlrev_b32 v9, 3, v5')
    a('v_lshrrev_b32 v10, 3, v1')
    a(f'v_add_u32 v10, s{sT1}, v10')
    a('v_lshlrev_b32 v10, 12, v10')
    a('v_and_b32 v12, 7, v1')
    a(f'v_add_u32 v12, s{sT2}, v12')
    a('v_cmp_gt_u32 vcc, 224, v1')
    a('v_lshl_add_u32 v10, v12, 4, v10')
    a(f'v_mov_b32 v11, {OOB:#x}')
    for r in (7, 6, 8, 9):
        a(f'v_cndmask_b32 v{r}, v11, v{r}, vcc')
    a(f'v_mov_b32 v12, {L_KVT + 32*272}')
    a('v_cndmask_b32 v3, v12, v3, vcc')
    a('v_cmp_gt_u32 vcc, 192, v1')
    a(f'v_add_u32 v12, {32*4096}, v10')
    a('s_nop 0')
    a('v_cndmask_b32 v11, v11, v12, vcc')
    for r in range(3):
        a(f'buffer_load_dword v{20+r}, v7, {q(SRD_A)}, 0 offen offset:{r*ROWB}')
    for r in range(4):
        a(f'buffer_load_dword v{23+r}, v6, {q(SRD_A)}, 0 offen offset:{r*ROWB}')
    for r in range(4):
        a(f'buffer_load_dword v{27+r}, v8, {q(SRD_A)}, 0 offen offset:{r*ROWB}')
    a(f'buffer_load_dwordx4 v[40:43], v9, {q(SRD_C)}, 0 offen')
    for r in range(4):
        a(f'buffer_load_dword v{32+r}, v6, {q(SRD_B)}, 0 offen offset:{r*ROWB}')
    for r in range(4):
        a(f'buffer_load_dword v{36+r}, v8, {q(SRD_B)}, 0 offen offset:{r*ROWB}')


def kv_compute(a, n_after, mid=None):
    a(f's_waitcnt vmcnt({8 + n_after})')
    for r in range(11):
        a(f'v_lshlrev_b32 v{44+2*r}, 16, v{20+r}')
        a(f'v_and_b32 v{45+2*r}, s{sMASKHI}, v{20+r}')
    a('v_lshlrev_b32 v66, 16, v40'); a('v_lshlrev_b32 v67, 16, v42')
    a(f'v_and_b32 v68, s{sMASKHI}, v40'); a(f'v_and_b32 v69, s{sMASKHI}, v42')
    a('v_lshlrev_b32 v70, 16, v41'); a('v_lshlrev_b32 v71, 16, v43')
    a(f'v_and_b32 v72, s{sMASKHI}, v41'); a(f'v_and_b32 v73, s{sMASKHI}, v43')
    for i0 in range(0, 8, 2):
        T = {i0: 74, i0 + 1: 82}
        for i in (i0, i0 + 1):
            t = T[i]
            for jj, tap in enumerate((3, 2, 1, 0)):
                kr = 44 + 2 * (i + jj)
                a(f'v_pk_mul_f32 v[{t+2*jj}:{t+2*jj+1}], v[{kr}:{kr+1}], v[{66+2*tap}:{67+2*tap}]')
        for jj in range(4):
            for i in (i0, i0 + 1):
                rnd(a, T[i] + 2 * jj)
        for jj in range(1, 4):
            for i in (i0, i0 + 1):
                t = T[i]
                a(f'v_pk_add_f32 v[{t}:{t+1}], v[{t}:{t+1}], v[{t+2*jj}:{t+2*jj+1}]')
            for i in (i0, i0 + 1):
                rnd(a, T[i])
        if i0 == 0:
            a(f's_waitcnt vmcnt({n_after})')
            tag_step1(a)
        for i in (i0, i0 + 1):
            t = T[i]
            a(f'v_lshlrev_b32 v{t+2}, 16, v{32+i}')
            a(f'v_and_b32 v{t+3}, s{sMASKHI}, v{32+i}')
        for i in (i0, i0 + 1):
            t = T[i]
            a(f'v_pk_mul_f32 v[{t}:{t+1}], v[{t}:{t+1}], v[{t+2}:{t+3}]')
        for i in (i0, i0 + 1):
            t = T[i]
            a(f'v_cvt_pk_bf16_f32 v{90+i}, v{t}, v{t+1}')
    a(f's_mov_b32 s{sT0}, 0x05040100')
    a(f's_mov_b32 s{sT1}, 0x07060302')
    for w in range(4):
        a(f'v_perm_b32 v{100+w}, v{90+6-2*w}, v{90+7-2*w}, s{sT0}')
        a(f'v_perm_b32 v{104+w}, v{90+6-2*w}, v{90+7-2*w}, s{sT1}')
    a('ds_write_b128 v3, v[100:103]')
    a('ds_write_b128 v3, v[104:107] offset:128')
    if mid:
        mid()
    xcd_check(a, False)
    a('s_waitcnt lgkmcnt(0)')
    a('s_barrier')
    a('ds_read_b128 v[100:103], v4')
    a(f'ds_read_b128 v[104:107], v4 offset:{16*272}')
    read_nonce(a)
    a(f's_mov_b32 s{sT2}, {WS_KVR}')

    def em(st):
        a(f'buffer_store_dwordx4 v[100:103], v10, {WSQ}, s{sT2} offen {st}')
        a(f'buffer_store_dwordx4 v[104:107], v11, {WSQ}, s{sT2} offen {st}')
    stores2(a, em)


def tag_step1(a):
    lz = a.newlabel('gn')
    a(f's_cmp_lg_u32 s{sWAVE}, 0')
    a(f's_cbranch_scc1 {lz}')
    a(f'v_mov_b32 v{vPO}, 0')
    poll(a, SRD_DBG, '0', lambda: a(f'v_cmp_eq_u32 vcc, 0, v{vPD}'))
    a(f'v_readfirstlane_b32 s{sNONCE}, v{vPD}')
    a(f's_lshl_b32 s{sP0}, s{sG}, 4')
    a(f's_add_u32 s{sP0}, s{sP0}, s{sJ}')
    a(f's_lshl_b32 s{sP0}, s{sP0}, 4')
    a(f's_add_u32 s{sP0}, s{sP0}, {WS_F0}')
    a(f'v_or_b32 v{vPD}, s{sBYTE}, v{vPD}')
    a(f'v_lshlrev_b32 v{vPO}, 26, v0')
    a('v_cmp_eq_u32 vcc, 0, v0')
    a(f'v_mov_b32 v{vPT}, {OOB:#x}')
    a('s_nop 0')
    a(f'v_cndmask_b32 v{vPO}, v{vPT}, 0, vcc')
    a(f'buffer_store_dword v{vPD}, v{vPO}, {WSQ}, s{sP0} offen sc1')
    a.label(lz)


def xcd_check(a, blocking):
    lz = a.newlabel('xc')
    a(f's_cmp_lg_u32 s{sWAVE}, 0')
    a(f's_cbranch_scc1 {lz}')
    a(f's_and_b32 s{sP0}, s2, 7')
    a(f's_lshl_b32 s{sP0}, s{sP0}, 9')
    a(f's_add_u32 s{sP0}, s{sP0}, {WS_F0}')
    a(f'v_and_b32 v{vPO}, 31, v0')
    a(f'v_lshlrev_b32 v{vPO}, 4, v{vPO}')

    def chk():
        a(f'v_xor_b32 v{vPT}, s{sNONCE}, v{vPD}')
        a(f'v_cmp_lt_u32 vcc, 7, v{vPT}')
    if blocking:
        poll(a, SRD_WS, f's{sP0}', chk)
    else:
        a(f'buffer_load_dword v{vPD}, v{vPO}, {WSQ}, s{sP0} offen sc1')
        a('s_waitcnt vmcnt(0)')
    a(f's_or_b32 s{sT4}, s{sNONCE}, s{sBYTE}')
    a(f'v_cmp_ne_u32 vcc, s{sT4}, v{vPD}')
    a(f'v_mov_b32 v{vPT}, {L_MISC}')
    a(f'v_mov_b32 v249, s{sNONCE}')
    a('s_cmp_eq_u64 vcc, 0')
    a(f's_cselect_b32 s{sT4}, 1, 0')
    a(f'v_mov_b32 v248, s{sT4}')
    a(f'ds_write_b64 v{vPT}, v[248:249]')
    a.label(lz)


def read_nonce(a):
    a(f'v_mov_b32 v{vPT}, {L_MISC}')
    a(f'ds_read_b64 v[248:249], v{vPT}')
    a('s_waitcnt lgkmcnt(0)')
    a(f'v_readfirstlane_b32 s{sFAST}, v248')
    a(f'v_readfirstlane_b32 s{sNONCE}, v249')
    a(f'v_mov_b32 v{vONE}, v249')


def arrive(a, stages, first=False):
    a('s_waitcnt vmcnt(0) lgkmcnt(0)')
    a('s_barrier')
    lz = a.newlabel('arr')
    a(f's_cmp_lg_u32 s{sWAVE}, 0')
    a(f's_cbranch_scc1 {lz}')
    a(f's_lshl_b32 s{sP0}, s{sG}, 4')
    a(f's_add_u32 s{sP0}, s{sP0}, s{sJ}')
    a(f's_lshl_b32 s{sP0}, s{sP0}, 2')
    a(f'v_lshlrev_b32 v{vPO}, 26, v0')
    a('v_cmp_eq_u32 vcc, 0, v0')
    a(f'v_mov_b32 v{vPT}, {OOB:#x}')
    a('s_nop 0')
    a(f'v_cndmask_b32 v{vPO}, v{vPT}, 0, vcc')
    for st in stages:
        a(f's_add_u32 s{sP1}, s{sP0}, {[0, WS_F1, WS_F2, WS_F3][st]}')
        if st == 1:
            stores2(a, lambda p: a(f'buffer_store_dword v{vONE}, v{vPO}, {WSQ}, s{sP1} offen {p}'))
        else:
            a(f'buffer_store_dword v{vONE}, v{vPO}, {WSQ}, s{sP1} offen sc1')
    a.label(lz)


def poll(a, srd_, soff, check, sleep=0, first_issued=False, x4=None):
    lp, ld = a.newlabel('poll'), a.newlabel('pdone')
    a(f's_mov_b32 s{sP1}, 0')
    if first_issued:
        l1 = a.newlabel('pchk')
        a(f's_branch {l1}')
    a.label(lp)
    if sleep:
        a(f's_sleep {sleep}')
    if x4 is None:
        a(f'buffer_load_dword v{vPD}, v{vPO}, {q(srd_)}, {soff} offen sc1')
    else:
        a(f'buffer_load_dwordx4 v[{x4}:{x4+3}], v{vPO}, {q(srd_)}, {soff} offen sc1')
    if first_issued:
        a.label(l1)
    a(f's_add_u32 s{sP1}, s{sP1}, 1')
    a('s_waitcnt vmcnt(0)')
    check()
    a(f's_cmp_ge_u32 s{sP1}, {POLL_MAX}')
    a(f's_cbranch_scc1 {ld}')
    a(f's_cbranch_vccnz {lp}')
    a.label(ld)


def wait_kv(a):
    lz = a.newlabel('wk')
    a(f's_cmp_lg_u32 s{sWAVE}, 0')
    a(f's_cbranch_scc1 {lz}')
    a(f's_mul_i32 s{sP0}, s{sPAIR}, 2341')
    a(f's_lshr_b32 s{sP0}, s{sP0}, 16')
    a(f's_lshl_b32 s{sP0}, s{sP0}, 7')
    a(f's_add_u32 s{sP0}, s{sP0}, {WS_F1}')
    a(f'v_and_b32 v{vPO}, 31, v0')
    a(f'v_lshlrev_b32 v{vPO}, 2, v{vPO}')
    poll(a, SRD_WS, f's{sP0}', chk_one(a))
    a.label(lz)
    a('s_barrier')


def chk_all1(a, r):
    def chk():
        a(f'v_xor_b32 v{r}, s{sNONCE}, v{r}')
        a(f'v_xor_b32 v{r+1}, s{sNONCE}, v{r+1}')
        a(f'v_xor_b32 v{r+2}, s{sNONCE}, v{r+2}')
        a(f'v_xor_b32 v{r+3}, s{sNONCE}, v{r+3}')
        a(f'v_or3_b32 v{r}, v{r}, v{r+1}, v{r+2}')
        a(f'v_or_b32 v{r}, v{r}, v{r+3}')
        a(f'v_cmp_ne_u32 vcc, 0, v{r}')
    return chk


def wait_all1(a, first_issued=False):
    if not first_issued:
        a(f'v_lshlrev_b32 v{vPO}, 4, v0')
        a(f's_mov_b32 s{sP0}, {WS_F3}')
    poll(a, SRD_WS, f's{sP0}', chk_all1(a, 248), sleep=2, first_issued=first_issued, x4=248)


def flag_set(a, arr, drain=True):
    a(f's_add_u32 s{sP0}, s{sFL}, {arr*4096}')
    if drain:
        a('s_waitcnt vmcnt(0)')
    stores2(a, lambda st: a(f'buffer_store_dword v{vONE}, v{vL0}, {WSQ}, s{sP0} offen {st}'))


def chk_one(a):
    return lambda: a(f'v_cmp_ne_u32 vcc, s{sNONCE}, v{vPD}')


def po_xn(a):
    a(f'v_and_b32 v{vPO}, 15, v0')
    a(f'v_lshl_add_u32 v{vPO}, s{sWAVE}, 4, v{vPO}')
    a(f'v_lshlrev_b32 v{vPO}, 2, v{vPO}')


def po_h(a):
    a(f's_cmp_ge_u32 s{sJ}, 7')
    a(f's_cselect_b32 s{sP1}, 2, 0')
    a(f'v_bfe_u32 v{vPO}, v0, 1, 2')
    a(f'v_lshl_add_u32 v{vPO}, s{sWAVE}, 2, v{vPO}')
    a(f'v_lshl_add_u32 v{vPO}, v{vPO}, 2, s{sP1}')
    a(f'v_and_b32 v{vPD}, 1, v0')
    a(f'v_add_u32 v{vPO}, v{vPO}, v{vPD}')
    a(f'v_lshlrev_b32 v{vPO}, 2, v{vPO}')


def po_out(a):
    a(f's_lshr_b32 s{sP1}, s{sJ}, 3')
    a(f's_mul_i32 s{sP1}, s{sP1}, 28')
    a(f's_bfe_u32 s{sT0}, s{sJ}, 0x10002')
    a(f's_add_u32 s{sP1}, s{sP1}, s{sT0}')
    a(f'v_min_u32 v{vPO}, 13, v0')
    a(f'v_lshl_add_u32 v{vPO}, v{vPO}, 1, s{sP1}')
    a(f'v_lshlrev_b32 v{vPO}, 2, v{vPO}')


def flag_wait(a, arr, po):
    po(a)
    a(f's_add_u32 s{sP0}, s{sFL}, {arr*4096}')
    poll(a, SRD_WS, f's{sP0}', chk_one(a))


HC_OFF = [0, 1, 5, 9, 13, 5, 9, 13]
HC_BASE = [r * 4352 + 16 * HC_OFF[r] for r in range(8)]
C_KV = 35072
C_SLOT = 35072 + 33 * 144 + 112
assert C_SLOT % 256 == 0
C_RED = 0
C_YS = 8192
cJ32, cD, cA, cZ, cT, cB, cM, cKH, cLIN, cW = 108, 109, 110, 111, 112, 113, 114, 115, 116, 117


def emit_hcbase(a, r, dst, tmp):
    a(f'v_subrev_u32 {tmp}, 1, {r}')
    a(f'v_subrev_u32 {dst}, 4, {r}')
    a(f'v_cmp_lt_u32 vcc, 4, {r}')
    a('s_nop 1')
    a(f'v_cndmask_b32 {tmp}, {tmp}, {dst}, vcc')
    a(f'v_lshlrev_b32 {tmp}, 6, {tmp}')
    a(f'v_add_u32 {tmp}, 16, {tmp}')
    a(f'v_cmp_eq_u32 vcc, 0, {r}')
    a('s_nop 1')
    a(f'v_cndmask_b32 {tmp}, {tmp}, 0, vcc')
    a(f'v_mul_u32_u24 {dst}, 4352, {r}')
    a(f'v_add_u32 {dst}, {dst}, {tmp}')


def conv_loads(a):
    a(f's_lshr_b32 s{sT0}, s{sWAVE}, 1')
    a(f's_and_b32 s{sU0}, s{sWAVE}, 1')
    a(f's_lshl_b32 s{sT2}, s{sPAIR}, 1')
    a(f's_add_u32 s{sT2}, s{sT2}, s{sT0}')
    a(f's_lshl_b32 s{sU1}, s{sT2}, 12')
    srd(a, SRD_D, sSK, 4096, sU1)
    srd(a, SRD_E, sSD, D * 2)
    a(f's_mul_i32 s{sU2}, s{sT0}, {C_SLOT}')
    a(f'v_lshl_add_u32 v12, s{sU0}, 6, v0')
    a(f'v_lshlrev_b32 v{cJ32}, 5, v12')
    a(f'v_subrev_u32 v13, 16, v{cJ32}')
    a(f'buffer_load_dwordx4 v[120:123], v13, {q(SRD_D)}, 0 offen')
    a(f'buffer_load_dwordx4 v[124:127], v{cJ32}, {q(SRD_D)}, 0 offen')
    a(f'buffer_load_dwordx4 v[128:131], v{cJ32}, {q(SRD_D)}, 0 offen offset:16')
    a(f's_lshl_b32 s{sT2}, s{sT2}, 1')
    a(f'v_mov_b32 v13, s{sT2}')
    a(f'buffer_load_ushort v{cD}, v13, {q(SRD_E)}, 0 offen')
    a('v_lshrrev_b32 v13, 2, v12')
    a('v_mul_u32_u24 v13, 144, v13')
    a('v_and_b32 v14, 3, v12')
    a('v_lshl_add_u32 v13, v14, 5, v13')
    a(f'v_add_u32 v{cLIN}, s{sU2}, v13')
    a(f'v_add_u32 v{cW}, s{sU2}, v{cJ32}')


def conv_build(a):
    for i in range(4):
        a(f'v_mov_b32 v{40+i}, 0')
    a('v_lshrrev_b32 v6, 3, v0')
    emit_hcbase(a, 'v6', 'v7', 'v8')
    a('v_and_b32 v8, 7, v0')
    a('v_lshl_add_u32 v7, v8, 4, v7')
    a(f'v_add_u32 v7, s{sU2}, v7')
    a(f'v_lshl_add_u32 v9, v8, 4, s{sU2}')
    lz = a.newlabel('noz')
    a(f's_cmp_lg_u32 s{sU0}, 0')
    a(f's_cbranch_scc1 {lz}')
    a('ds_write_b128 v7, v[40:43]')
    a(f'ds_write_b128 v9, v[40:43] offset:{C_KV}')
    a.label(lz)
    d = 120
    for i in range(10):
        a(f'v_mov_b32 v{44+i}, v{d+1+i}')
    for i in range(11):
        a(f'v_alignbit_b32 v{54+i}, v{d+1+i}, v{d+i}, 16')
    for i in range(10):
        a(f'v_alignbit_b32 v{66+i}, v{d+2+i}, v{d+1+i}, 16')
    src = {0: d, 2: 44, 4: d + 2, 6: 46, 1: 54, 3: 66, 5: 56, 7: 68}
    for r in range(8):
        s = src[r]
        a(f'ds_write_b128 v{cW}, v[{s}:{s+3}] offset:{HC_BASE[r]+112}')
        a(f'ds_write_b128 v{cW}, v[{s+4}:{s+7}] offset:{HC_BASE[r]+128}')
    a(f'ds_write_b128 v{cW}, v[{d+8}:{d+11}] offset:{HC_BASE[0]+144}')
    a(f'v_lshlrev_b32 v{cD}, 16, v{cD}')
    a(f'v_and_b32 v{cM}, 31, v0')
    a(f'v_lshrrev_b32 v{cKH}, 5, v0')
    a(f'v_add_u32 v8, 1, v{cM}')
    a('v_and_b32 v9, 7, v8')
    emit_hcbase(a, 'v9', f'v{cA}', 'v13')
    a('v_lshrrev_b32 v8, 3, v8')
    a(f'v_sub_u32 v8, v8, v{cKH}')
    a(f'v_lshl_add_u32 v{cA}, v8, 4, v{cA}')
    a(f's_lshl_b32 s{sT6}, s{sU0}, 11')
    a(f's_add_u32 s{sT6}, s{sT6}, s{sU2}')
    a(f's_add_u32 s{sT6}, s{sT6}, {112-96}')
    a(f'v_add_u32 v{cA}, s{sT6}, v{cA}')
    a(f'v_lshl_add_u32 v{cZ}, v{cKH}, 4, s{sU2}')
    a(f'v_add_u32 v{cZ}, {C_KV}, v{cZ}')
    a(f's_lshl_b32 s{sT6}, s{sU0}, 4')
    a(f'v_subrev_u32 v{cT}, s{sT6}, v{cM}')
    a(f'v_add_u32 v{cT}, 1, v{cT}')
    a(f'v_mul_i32_i24 v{cT}, 144, v{cT}')
    a(f'v_add_u32 v{cT}, v{cT}, v{cZ}')


def conv_main(a, hooks):
    a(f's_add_u32 s{sT5}, s{sU1}, {WS_KVR}')
    a(f'buffer_load_dwordx4 v[32:35], v{cJ32}, {WSQ}, s{sT5} offen sc1')
    a(f'buffer_load_dwordx4 v[36:39], v{cJ32}, {WSQ}, s{sT5} offen offset:16 sc1')
    a(f'v_lshlrev_b32 v{vPO}, 4, v0')
    a(f's_mov_b32 s{sP0}, {WS_F3}')
    a('s_waitcnt vmcnt(0)')
    a(f'ds_write_b128 v{cLIN}, v[32:35] offset:{C_KV+144}')
    a(f'ds_write_b128 v{cLIN}, v[36:39] offset:{C_KV+160}')
    a(f's_cmp_ge_u32 s{sJ}, 7')
    a(f's_cselect_b32 s{sT2}, 7, 0')
    a(f's_sub_u32 s{sT2}, s{sJ}, s{sT2}')
    a(f's_mul_i32 s{sW2B}, s{sT2}, 112')
    a(f's_mul_i32 s{sT2}, s{sWAVE}, 28')
    a(f's_add_u32 s{sW2B}, s{sW2B}, s{sT2}')
    a(f's_lshl_b32 s{sW2B}, s{sW2B}, 11')
    a(f's_add_u32 s{sW2B}, s{sW2B}, {WS_W2F}')
    a('s_waitcnt lgkmcnt(0)')
    a('s_barrier')
    a.stamp('cv_ready')
    AP = [120, 128, 136]
    AZ = [144, 152]
    BB = [160, 176]

    def rdA(dst, ci, delta):
        a(f'ds_read_b128 v[{dst}:{dst+3}], v{cA} offset:{128*ci + 2*delta + 96}')

    def loads(ci):
        a(f'v_max_i32 v{cB}, v{cT}, v{cZ}')
        a(f'v_subrev_u32 v{cT}, 144, v{cT}')
        b = BB[ci % 2]
        a(f'ds_read_b128 v[{b}:{b+3}], v{cB}')
        rdA(AP[ci % 3], ci, 32)
        rdA(AZ[ci % 2], ci, 0)
        a(f'ds_read_b128 v[{b+4}:{b+7}], v{cB} offset:32')
        rdA(AP[ci % 3] + 4, ci, 16)
        rdA(AZ[ci % 2] + 4, ci, -16)
        a(f'ds_read_b128 v[{b+8}:{b+11}], v{cB} offset:64')
        a(f'ds_read_b128 v[{b+12}:{b+15}], v{cB} offset:96')
    rdA(AP[2], 0, -32)
    rdA(AP[2] + 4, 0, -48)
    loads(0)
    first = {64: True, 80: True}

    def mf(acc, A, B):
        c = '0' if first[acc] else f'v[{acc}:{acc+15}]'
        first[acc] = False
        a(f'v_mfma_f32_32x32x16_bf16 v[{acc}:{acc+15}], v[{A}:{A+3}], v[{B}:{B+3}], {c}')
    for ci in range(16):
        if ci in hooks:
            hooks[ci]()
        if ci + 1 < 16:
            loads(ci + 1)
            a('s_waitcnt lgkmcnt(8)')
        else:
            a('s_waitcnt lgkmcnt(0)')
        p, pp, z, b = AP[ci % 3], AP[(ci + 2) % 3], AZ[ci % 2], BB[ci % 2]
        mf(80, p, b); mf(64, z, b)
        mf(80, p + 4, b + 4); mf(64, z + 4, b + 4)
        mf(80, z, b + 8); mf(64, pp, b + 8)
        mf(80, z + 4, b + 12); mf(64, pp + 4, b + 12)
    a.stamp('cv_loop')
    a(f'v_mul_u32_u24 v18, 144, v{cM}')
    a(f'v_xor_b32 v19, 1, v{cKH}')
    a('v_lshl_add_u32 v19, v19, 3, v18')
    a(f's_lshl_b32 s{sT8}, s{sU0}, 6')
    a(f's_add_u32 s{sT8}, s{sT8}, s{sU2}')
    a(f'v_add_u32 v19, s{sT8}, v19')
    for g in range(4):
        a(f'ds_read_b64 v[{96+2*g}:{97+2*g}], v19 offset:{C_KV+144+16*g}')
    a(f's_lshl_b32 s{sT6}, s{sU0}, 12')
    a(f's_add_u32 s{sT6}, s{sT6}, s{sU2}')
    a(f'v_lshl_add_u32 v16, v0, 4, s{sT6}')
    a(f's_xor_b32 s{sT7}, s{sU0}, 1')
    a(f's_lshl_b32 s{sT7}, s{sT7}, 12')
    a(f's_add_u32 s{sT7}, s{sT7}, s{sU2}')
    a(f'v_lshl_add_u32 v17, v0, 4, s{sT7}')
    a(f'v_lshl_add_u32 v18, v{cKH}, 3, v18')
    a(f'v_add_u32 v18, s{sT8}, v18')
    a('s_barrier')
    l1, l2 = a.newlabel('cx'), a.newlabel('cy')
    a(f's_cmp_lg_u32 s{sU0}, 0')
    a(f's_cbranch_scc1 {l1}')
    for g in range(4):
        a(f'ds_write_b128 v16, v[{80+4*g}:{83+4*g}] offset:{C_RED+1024*g}')
    a(f's_branch {l2}')
    a.label(l1)
    for g in range(4):
        a(f'ds_write_b128 v16, v[{64+4*g}:{67+4*g}] offset:{C_RED+1024*g}')
    for i in range(0, 16, 2):
        a(f'v_mov_b64 v[{64+i}:{65+i}], v[{80+i}:{81+i}]')
    a.label(l2)
    a('s_waitcnt lgkmcnt(0)')
    a('s_barrier')
    for g in range(4):
        a(f'ds_read_b128 v[{80+4*g}:{83+4*g}], v17 offset:{C_RED+1024*g}')
    for g in range(4):
        w0, w1 = 96 + 2 * g, 97 + 2 * g
        t = 120 + 4 * g
        a(f'v_and_b32 v{t}, s{sMASKHI}, v{w1}')
        a(f'v_lshlrev_b32 v{t+1}, 16, v{w1}')
        a(f'v_and_b32 v{t+2}, s{sMASKHI}, v{w0}')
        a(f'v_lshlrev_b32 v{t+3}, 16, v{w0}')
        for e in range(4):
            a(f'v_mul_f32 v{t+e}, v{cD}, v{t+e}')
        rnd(a, t)
        rnd(a, t + 2)
    a('s_waitcnt lgkmcnt(0)')
    for i in range(0, 16, 2):
        a(f'v_pk_add_f32 v[{64+i}:{65+i}], v[{64+i}:{65+i}], v[{80+i}:{81+i}]')
        rnd(a, 64 + i)
        a(f'v_pk_add_f32 v[{64+i}:{65+i}], v[{64+i}:{65+i}], v[{120+i}:{121+i}]')
        a(f'v_cvt_pk_bf16_f32 v{80+i//2}, v{64+i}, v{65+i}')
    for g in range(4):
        a(f'ds_write_b64 v18, v[{80+2*g}:{81+2*g}] offset:{C_YS+16*g}')
    a('s_waitcnt lgkmcnt(0)')
    a('s_barrier')
    a(f'ds_read_b128 v[20:23], v{cLIN} offset:{C_YS}')
    a(f'ds_read_b128 v[24:27], v{cLIN} offset:{C_YS+16}')
    a(f's_add_u32 s{sT5}, s{sU1}, {WS_YT}')
    a('s_waitcnt lgkmcnt(0)')
    a(f'buffer_store_dwordx4 v[20:23], v{cJ32}, {WSQ}, s{sT5} offen sc1')
    a(f'buffer_store_dwordx4 v[24:27], v{cJ32}, {WSQ}, s{sT5} offen offset:16 sc1')
    a.stamp('cv_st')


L_RL = 2 * C_SLOT
vRL = 118


def relayout(a, part):
    if part == 0:
        lw2, ld = a.newlabel('rl_w2'), a.newlabel('rl_go')
        a(f's_lshl_b32 s{sT0}, s2, 2')
        a(f's_add_u32 s{sT0}, s{sT0}, s{sWAVE}')
        a(f's_lshl_b32 s{sT5}, s{sWAVE}, 12')
        a(f's_add_u32 s{sT5}, s{sT5}, {L_RL}')
        a('v_lshrrev_b32 v12, 3, v0')
        a('v_and_b32 v13, 7, v0')
        a('v_lshlrev_b32 v13, 4, v13')
        a('v_bfe_u32 v15, v0, 2, 2')
        a('v_lshlrev_b32 v15, 7, v15')
        a('v_and_b32 v14, 3, v0')
        a('v_lshl_add_u32 v15, v14, 3, v15')
        a(f'v_add_u32 v15, s{sT5}, v15')
        a(f's_cmp_ge_u32 s{sT0}, 392')
        a(f's_cbranch_scc1 {lw2}')
        srd(a, SRD_E, sW1, D * F * 2)
        a(f's_mul_i32 s{sT1}, s{sT0}, 4682')
        a(f's_lshr_b32 s{sT1}, s{sT1}, 16')
        a(f's_mul_i32 s{sT2}, s{sT1}, 14')
        a(f's_sub_u32 s{sT2}, s{sT0}, s{sT2}')
        a(f's_lshl_b32 s{sT3}, s{sT1}, 7')
        a(f's_mul_i32 s{sT4}, s{sT2}, {32*F*2}')
        a(f's_add_u32 s{sT3}, s{sT3}, s{sT4}')
        a(f's_mov_b32 s{sT4}, {8*F*2}')
        a(f's_mul_i32 s{sRL0}, s{sT1}, {4*14*1024}')
        a(f's_lshl_b32 s{sT2}, s{sT2}, 10')
        a(f's_add_u32 s{sRL0}, s{sRL0}, s{sT2}')
        a(f's_add_u32 s{sRL0}, s{sRL0}, {WS_W1F}')
        a(f's_mov_b32 s{sRL1}, {14*1024}')
        a(f'v_mul_u32_u24 v14, {F*2}, v12')
        a('v_lshrrev_b32 v12, 4, v0')
        a('v_lshl_add_u32 v15, v12, 10, v15')
        a(f's_mov_b32 s{sRL2}, 0')
        a(f's_branch {ld}')
        a.label(lw2)
        srd(a, SRD_E, sW2, D * F * 2)
        a(f's_sub_u32 s{sT0}, s{sT0}, 392')
        a(f's_mul_i32 s{sT1}, s{sT0}, 1171')
        a(f's_lshr_b32 s{sT1}, s{sT1}, 16')
        a(f's_mul_i32 s{sT2}, s{sT1}, 56')
        a(f's_sub_u32 s{sT2}, s{sT0}, s{sT2}')
        a(f's_lshl_b32 s{sT3}, s{sT1}, 7')
        a(f's_mul_i32 s{sT4}, s{sT2}, {32*ROWB}')
        a(f's_add_u32 s{sT3}, s{sT3}, s{sT4}')
        a(f's_mov_b32 s{sT4}, {8*ROWB}')
        a(f's_mul_i32 s{sRL0}, s{sT1}, {112*2048}')
        a(f's_lshl_b32 s{sT2}, s{sT2}, 12')
        a(f's_add_u32 s{sRL0}, s{sRL0}, s{sT2}')
        a(f's_add_u32 s{sRL0}, s{sRL0}, {WS_W2F}')
        a(f's_mov_b32 s{sRL1}, 1024')
        a(f's_cmp_ge_u32 s{sT0}, 392')
        a(f's_cselect_b32 s{sT3}, 0, s{sT3}')
        a(f's_cselect_b32 s{sRL0}, {OOB:#x}, s{sRL0}')
        a(f'v_mul_u32_u24 v14, {ROWB}, v12')
        a('v_lshrrev_b32 v12, 5, v0')
        a('v_lshl_add_u32 v15, v12, 10, v15')
        a('v_bfe_u32 v12, v0, 4, 1')
        a('v_lshl_add_u32 v15, v12, 5, v15')
        a(f's_mov_b32 s{sRL2}, 1')
        a.label(ld)
        a('v_add_u32 v14, v14, v13')
        a(f'v_mov_b32 v{vRL}, v15')
        for i in range(4):
            a(f's_add_u32 m0, s{sT5}, {i*1024}')
            if i:
                a(f's_add_u32 s{sT3}, s{sT3}, s{sT4}')
            else:
                a('s_nop 0')
            a(f'buffer_load_dwordx4 v14, {q(SRD_E)}, s{sT3} offen lds')
        return
    lw2, ld = a.newlabel('rl_w2'), a.newlabel('rl_go')
    a(f'v_lshlrev_b32 v119, 4, v0')
    a(f's_cmp_lg_u32 s{sRL2}, 0')
    a(f's_cbranch_scc1 {lw2}')
    for f in range(4):
        r = 16 + 4 * f
        a(f'ds_read_b64_tr_b16 v[{r}:{r+1}], v{vRL} offset:{32*f}')
        a(f'ds_read_b64_tr_b16 v[{r+2}:{r+3}], v{vRL} offset:{32*f + 512}')
    a(f's_branch {ld}')
    a.label(lw2)
    for f in range(4):
        r = 16 + 4 * f
        a(f'ds_read_b64_tr_b16 v[{r}:{r+1}], v{vRL} offset:{2048*(f>>1) + 64*(f&1)}')
        a(f'ds_read_b64_tr_b16 v[{r+2}:{r+3}], v{vRL} offset:{2048*(f>>1) + 64*(f&1) + 512}')
    a.label(ld)
    for f in range(4):
        r = 16 + 4 * f
        a(f's_waitcnt lgkmcnt({6 - 2*f})')
        a(f'buffer_store_dwordx4 v[{r}:{r+3}], v119, {WSQ}, s{sRL0} offen sc1')
        if f < 3:
            a(f's_add_u32 s{sRL0}, s{sRL0}, s{sRL1}')


def load_w2(a):
    for n in range(56):
        if n % 4 == 0:
            a(f's_add_u32 s{sT2}, s{sW2B}, {n*1024}')
        a(f'buffer_load_dwordx4 a[{4*n}:{4*n+3}], v119, {WSQ}, s{sT2} offen offset:{(n%4)*1024}')


def load_w1(a):
    lz = a.newlabel('w1skip')
    a(f's_cmp_eq_u32 s{sWAVE}, 0')
    a(f's_cbranch_scc1 {lz}')
    a(f's_sub_u32 s{sT0}, s{sWAVE}, 1')
    a(f's_mul_i32 s{sT0}, s{sT0}, {33*1024}')
    a(f's_mul_i32 s{sT1}, s{sJ}, {W1_BYTES}')
    a(f's_add_u32 s{sT1}, s{sT1}, {WS_W1F}')
    a(f's_add_u32 s{sT1}, s{sT1}, s{sT0}')
    a('v_lshlrev_b32 v1, 4, v0')
    for i in range(33):
        if i == 32:
            a(f's_cmp_eq_u32 s{sWAVE}, 3')
            a(f's_cbranch_scc1 {lz}')
        if i % 4 == 0:
            a(f's_add_u32 m0, s{sT0}, {i*1024}')
            a(f's_add_u32 s{sT2}, s{sT1}, {i*1024}')
        a(f'buffer_load_dwordx4 v1, {WSQ}, s{sT2} offen offset:{(i%4)*1024} lds')
    a.label(lz)


DPP = ['quad_perm:[1,0,3,2] row_mask:0xf bank_mask:0xf', 'quad_perm:[2,3,0,1] row_mask:0xf bank_mask:0xf',
       'row_half_mirror row_mask:0xf bank_mask:0xf', 'row_mirror row_mask:0xf bank_mask:0xf',
       'row_bcast:15 row_mask:0xa bank_mask:0xf', 'row_bcast:31 row_mask:0xc bank_mask:0xf']


def ln2(a, X, O, T, packed_out=None):
    s = sL
    a('s_nop 0')
    a(f'v_readfirstlane_b32 s{s}, v{X[0]}')
    a(f'v_readfirstlane_b32 s{s+1}, v{X[0]}')
    a(f'v_readfirstlane_b32 s{s+2}, v{X[1]}')
    a(f'v_readfirstlane_b32 s{s+3}, v{X[1]}')
    a(f's_mov_b32 s{s+8}, {f32bits(1.0/448):#x}')
    for r in range(2):
        x, o = X[r], O[r]
        for e in range(0, 8, 2):
            a(f'v_pk_add_f32 v[{o+e}:{o+e+1}], v[{x+e}:{x+e+1}], s[{s+2*r}:{s+2*r+1}] neg_lo:[0,1] neg_hi:[0,1]')
    for r in range(2):
        o, t = O[r], T + 4 * r
        a(f'v_pk_add_f32 v[{t}:{t+1}], v[{o}:{o+1}], v[{o+2}:{o+3}]')
        a(f'v_pk_mul_f32 v[{t+2}:{t+3}], v[{o}:{o+1}], v[{o}:{o+1}]')
        for e in (4, 6):
            a(f'v_pk_add_f32 v[{t}:{t+1}], v[{t}:{t+1}], v[{o+e}:{o+e+1}]')
        for e in (2, 4, 6):
            a(f'v_pk_fma_f32 v[{t+2}:{t+3}], v[{o+e}:{o+e+1}], v[{o+e}:{o+e+1}], v[{t+2}:{t+3}]')
    for r in range(2):
        t = T + 4 * r
        a(f'v_add_f32 v{t}, v{t}, v{t+1}')
        a(f'v_add_f32 v{t+1}, v{t+2}, v{t+3}')
    for r in range(2):
        t = T + 4 * r
        a(f'v_mul_f32 v{t}, v{vVALID}, v{t}')
        a(f'v_mul_f32 v{t+1}, v{vVALID}, v{t+1}')
    regs = [T, T + 1, T + 4, T + 5]
    for st in DPP:
        for v in regs:
            a(f'v_add_f32_dpp v{v}, v{v}, v{v} {st}')
    for i, v in enumerate(regs):
        a(f'v_readlane_b32 s{s+4+i}, v{v}, 63')
    a(f'v_mov_b32 v{T+8}, s{s+8}')
    a(f'v_mul_f32 v{T}, s{s+4}, v{T+8}')
    a(f'v_mul_f32 v{T+1}, s{s+6}, v{T+8}')
    a(f'v_mul_f32 v{T+2}, s{s+5}, v{T+8}')
    a(f'v_mul_f32 v{T+3}, s{s+7}, v{T+8}')
    a(f'v_pk_fma_f32 v[{T+2}:{T+3}], v[{T}:{T+1}], v[{T}:{T+1}], v[{T+2}:{T+3}] neg_lo:[1,0,0] neg_hi:[1,0,0]')
    a(f'v_add_f32 v{T}, s{s}, v{T}')
    a(f'v_add_f32 v{T+1}, s{s+2}, v{T+1}')
    a(f'v_max_f32 v{T+2}, 0, v{T+2}')
    a(f'v_max_f32 v{T+3}, 0, v{T+3}')
    rnd(a, T)
    rnd(a, T + 2)
    a(f'v_add_f32 v{T+2}, {f32bits(1e-5):#x}, v{T+2}')
    a(f'v_add_f32 v{T+3}, {f32bits(1e-5):#x}, v{T+3}')
    rnd(a, T + 2)
    a(f'v_sqrt_f32 v{T+2}, v{T+2}')
    a(f'v_sqrt_f32 v{T+3}, v{T+3}')
    sel = ['op_sel_hi:[1,0]', 'op_sel:[0,1] op_sel_hi:[1,1]']
    for e in range(0, 8, 2):
        a(f'v_pk_add_f32 v[{O[0]+e}:{O[0]+e+1}], v[{X[0]+e}:{X[0]+e+1}], v[{T}:{T+1}] {sel[0]} neg_lo:[0,1] neg_hi:[0,1]')
    rnd(a, T + 2)
    a(f'v_rcp_f32 v{T+4}, v{T+2}')
    a(f'v_rcp_f32 v{T+5}, v{T+3}')
    for e in range(0, 8, 2):
        a(f'v_pk_add_f32 v[{O[1]+e}:{O[1]+e+1}], v[{X[1]+e}:{X[1]+e+1}], v[{T}:{T+1}] {sel[1]} neg_lo:[0,1] neg_hi:[0,1]')
    a(f'v_fma_f32 v{T+6}, -v{T+2}, v{T+4}, 1.0')
    a(f'v_fma_f32 v{T+7}, -v{T+3}, v{T+5}, 1.0')
    a(f'v_pk_fma_f32 v[{T+4}:{T+5}], v[{T+6}:{T+7}], v[{T+4}:{T+5}], v[{T+4}:{T+5}]')
    for r in range(2):
        o = O[r]
        for e in range(0, 8, 2):
            rnd(a, o + e)
            a(f'v_pk_mul_f32 v[{o+e}:{o+e+1}], v[{o+e}:{o+e+1}], v[{T+4}:{T+5}] {sel[r]}')
            if packed_out:
                a(f'v_cvt_pk_bf16_f32 v{packed_out[r]+e//2}, v{o+e}, v{o+e+1}')
            else:
                rnd(a, o + e)


def gate2(a, X, N, Y, T):
    for r in range(2):
        for e in range(8):
            if r == 0:
                a(f'v_lshlrev_b32 v{T+e}, 16, v{Y+e}')
            else:
                a(f'v_and_b32 v{T+e}, s{sMASKHI}, v{Y+e}')
        for e in range(0, 8, 2):
            n, x = N[r] + e, X[r] + e
            a(f'v_pk_mul_f32 v[{n}:{n+1}], v[{n}:{n+1}], v[{T+e}:{T+e+1}]')
            rnd(a, n)
            a(f'v_pk_add_f32 v[{x}:{x+1}], v[{x}:{x+1}], v[{n}:{n+1}]')
            rnd(a, x)


def store_rows(a, P, wsoff, pair=False):
    a(f's_mov_b32 s{sT0}, {wsoff}')

    def em(st):
        for r in range(2):
            if pair:
                a(f'buffer_store_dwordx4 v[{P[r]}:{P[r]+3}], v{vXNO}, {WSQ}, s{sT0} offen offset:{r*16} {st}')
            else:
                a(f'buffer_store_dwordx4 v[{P[r]}:{P[r]+3}], v{vROW}, {WSQ}, s{sT0} offen offset:{r*ROWB} {st}')
    stores2(a, em)


def q_loads(a):
    srd(a, SRD_C, sQ, NB)
    a(f'buffer_load_dwordx4 v[192:195], v{vROW}, {q(SRD_C)}, 0 offen')
    a(f'buffer_load_dwordx4 v[196:199], v{vROW}, {q(SRD_C)}, 0 offen offset:{ROWB}')


def ln1_pre(a):
    unpack8(a, 192, vX0)
    unpack8(a, 196, vX1)
    ln2(a, [vX0, vX1], [vN0, vN1], 20)


def wait_y_gather(a):
    xcd_check(a, True)
    lz = a.newlabel('wy')
    a(f's_cmp_lg_u32 s{sWAVE}, 0')
    a(f's_cbranch_scc1 {lz}')
    a(f'v_lshlrev_b32 v{vPO}, 4, v0')
    a(f's_mov_b32 s{sP0}, {WS_F2}')

    poll(a, SRD_WS, f's{sP0}', chk_all1(a, 248), sleep=2, x4=248)
    a.stamp('y_wait')
    a(f's_lshl_b32 s{sT0}, s{sG}, 7')
    a(f's_lshl_b32 s{sT1}, s{sJ}, 3')
    a(f's_add_u32 s{sT0}, s{sT0}, s{sT1}')
    a(f's_lshl_b32 s{sT0}, s{sT0}, 1')
    a(f's_add_u32 s{sT0}, s{sT0}, {WS_YT}')
    a('v_lshlrev_b32 v2, 12, v0')
    for i in range(7):
        a(f's_add_u32 s{sT1}, s{sT0}, {i*64*4096}')
        a(f'buffer_load_dwordx4 v[{16+4*i}:{19+4*i}], v2, {WSQ}, s{sT1} offen sc1')
    a('v_lshlrev_b32 v3, 2, v0')
    a(f'v_add_u32 v3, {L_YS}, v3')
    for i in range(7):
        a(f's_waitcnt vmcnt({6-i})')
        for w in range(4):
            a(f'ds_write_b32 v3, v{16+4*i+w} offset:{w*1792 + i*256}')
    a.label(lz)
    a(f's_mul_i32 s{sT0}, s{sWAVE}, 1792')
    a(f's_add_u32 s{sT0}, s{sT0}, {L_YS}')
    a('v_min_u32 v3, 55, v0')
    a(f'v_lshl_add_u32 v3, v3, 5, s{sT0}')
    a('s_waitcnt lgkmcnt(0)')
    a('s_barrier')
    a(f'ds_read_b128 v[{vY}:{vY+3}], v3')
    a(f'ds_read_b128 v[{vY+4}:{vY+7}], v3 offset:16')
    a('v_cmp_gt_u32 vcc, 56, v0')
    read_nonce(a)
    for e in range(8):
        a(f'v_cndmask_b32 v{vY+e}, 0, v{vY+e}, vcc')


def ln1_post(a):
    gate2(a, [vX0, vX1], [vN0, vN1], vY, 40)
    ln2(a, [vX0, vX1], [vN0, vN1], 20, packed_out=[48, 52])
    store_rows(a, [48, 52], WS_XN1, pair=True)


def ln_mid(a):
    a(f's_mov_b32 s{sT0}, {WS_OUT1}')
    a(f'buffer_load_dwordx4 v[4:7], v{vROW}, {WSQ}, s{sT0} offen sc1')
    a(f'buffer_load_dwordx4 v[8:11], v{vROW}, {WSQ}, s{sT0} offen offset:{ROWB} sc1')
    a('s_waitcnt vmcnt(1)')
    unpack8(a, 4, vN0)
    a('s_waitcnt vmcnt(0)')
    unpack8(a, 8, vN1)
    for (x, o) in ((vX0, vN0), (vX1, vN1)):
        for e in range(0, 8, 2):
            a(f'v_pk_add_f32 v[{x+e}:{x+e+1}], v[{x+e}:{x+e+1}], v[{o+e}:{o+e+1}]')
            rnd(a, x + e)
    ln2(a, [vX0, vX1], [vN0, vN1], 20)
    gate2(a, [vX0, vX1], [vN0, vN1], vY, 40)
    pack8(a, vX0, 56)
    pack8(a, vX1, 60)
    store_rows(a, [56, 60], WS_X3)
    ln2(a, [vX0, vX1], [vN0, vN1], 20, packed_out=[48, 52])
    store_rows(a, [48, 52], WS_XN3, pair=True)


XB = 16
ACC1 = 128
AFR = [168, 172, 176, 180, 184, 188, 192, 196, 226, 230, 234, 238]
ACC2 = 128
PASSES = [(0, 1, 2, 3, 4), (5, 6)]
ORDER = [7 * m + f for p in PASSES for m in range(4) for f in p]


def mlp(a):
    fA, fB = 1, 2
    lnog2 = a.newlabel('nog2')
    a(f's_mul_i32 s{sT8}, s{sLAYER}, {WS_H2 - WS_H1}')
    a(f's_add_u32 s{sT8}, s{sT8}, {WS_H1}')
    a(f's_mul_i32 s{sT5}, s{sLAYER}, {WS_XN3 - WS_XN1}')
    a(f's_add_u32 s{sT5}, s{sT5}, {WS_XN1}')
    a(f's_lshl_b32 s{sT0}, s{sG}, 7')
    a(f's_lshl_b32 s{sT1}, s{sWAVE}, 5')
    a(f's_add_u32 s{sT0}, s{sT0}, s{sT1}')
    a(f's_mul_i32 s{sT0}, s{sT0}, {ROWB}')
    a(f's_add_u32 s{sT0}, s{sT0}, s{sT5}')
    a(f's_add_u32 s{sT1}, s{sT0}, {16*ROWB}')
    a('v_lshlrev_b32 v3, 4, v0')
    a('v_add_u32 v2, 0x1000, v3')
    a('v_add_u32 v1, 0x2000, v3')
    a('v_add_u32 v9, 0x3000, v3')

    def ldx(ks):
        for rt in range(2):
            d = XB + (rt * 14 + ks) * 4
            a(f'buffer_load_dwordx4 v[{d}:{d+3}], v{[3, 2, 1, 9][ks//4]}, {WSQ}, s{sT0+rt} offen offset:{1024*(ks%4)} {LDB}')
    for ks in range(XPRE):
        ldx(ks)
    a('v_lshlrev_b32 v4, 4, v0')
    a('v_add_u32 v5, 0x10000, v4')
    a(f'v_add_u32 v6, {112*1024}, v4')
    a(f's_lshl_b32 s{sU0}, s{sG}, 2')
    a(f's_add_u32 s{sU0}, s{sU0}, s{sWAVE}')
    a(f's_mul_i32 s{sU0}, s{sU0}, 112')
    a(f's_mul_i32 s{sT2}, s{sJ}, 7')
    a(f's_add_u32 s{sU0}, s{sU0}, s{sT2}')
    a(f's_lshl_b32 s{sU0}, s{sU0}, 10')
    a(f's_add_u32 s{sU0}, s{sU0}, s{sT8}')
    a(f's_add_u32 s{sU1}, s{sU0}, 4096')
    a(f's_cmp_ge_u32 s{sJ}, 7')
    a(f's_cselect_b32 s{sT2}, 1, 0')
    a(f's_mul_i32 s{sT3}, s{sT2}, 7')
    a(f's_sub_u32 s{sT3}, s{sJ}, s{sT3}')
    a(f's_lshl_b32 s{sT6}, s{sG}, 2')
    a(f's_lshl_b32 s{sT2}, s{sT2}, 1')
    a(f's_add_u32 s{sT6}, s{sT6}, s{sT2}')
    a(f's_mul_i32 s{sU2}, s{sT6}, 112')
    a(f's_mul_i32 s{sT2}, s{sWAVE}, 28')
    a(f's_add_u32 s{sU2}, s{sU2}, s{sT2}')
    a(f's_lshl_b32 s{sU2}, s{sU2}, 10')
    a(f's_add_u32 s{sU2}, s{sU2}, s{sT8}')
    a(f's_mul_i32 s{sU3}, s{sT3}, 112')
    a(f's_add_u32 s{sU3}, s{sU3}, s{sT2}')
    a(f's_lshl_b32 s{sU3}, s{sU3}, 11')
    a(f's_add_u32 s{sU3}, s{sU3}, {WS_W2F}')
    a(f's_mov_b32 s{sT7}, s{sT3}')

    def rdA(buf, ftl, ks):
        idx = ftl * 14 + ks
        base, off = ('v4', idx * 1024) if idx < 64 else ('v5', (idx - 64) * 1024)
        a(f'ds_read_b128 v[{buf}:{buf+3}], {base} offset:{off}')

    def g1_pass(fts, hook):
        n = len(fts)
        nset = 2 if n > 4 else 3
        ahead = nset - 1

        def bufs(ks):
            s0 = (ks % nset) * (12 // nset)
            return AFR[s0:s0 + n]
        for ks0 in range(ahead):
            for i, ftl in enumerate(fts):
                rdA(bufs(ks0)[i], ftl, ks0)
        for ks in range(14):
            if ks + ahead < 14:
                for i, ftl in enumerate(fts):
                    rdA(bufs(ks + ahead)[i], ftl, ks + ahead)
            hook(ks, 'pre')
            a(f's_waitcnt lgkmcnt({n * min(ahead, 13 - ks)})')
            for i, ftl in enumerate(fts):
                for rt in range(2):
                    c = ACC1 + (i * 2 + rt) * 4
                    b = XB + (rt * 14 + ks) * 4
                    cin = '0' if ks == 0 else f'v[{c}:{c+3}]'
                    a(f'v_mfma_f32_16x16x32_bf16 v[{c}:{c+3}], v[{bufs(ks)[i]}:{bufs(ks)[i]+3}], v[{b}:{b+3}], {cin}')
            hook(ks, 'post')

    def g1_epi(fts):
        a('s_nop 7')
        for i, ftl in enumerate(fts):
            c = ACC1 + i * 8
            for k in range(8):
                a(f'v_maximum3_f32 v{c+k}, v{c+k}, 0, 0')
            for k in range(4):
                a(f'v_cvt_pk_bf16_f32 v{c+k}, v{c+2*k}, v{c+2*k+1}')
        a('s_nop 1')
        for i, ftl in enumerate(fts):
            o = ACC1 + i * 8
            a(f'v_permlane16_swap_b32 v{o}, v{o+2}')
            a(f'v_permlane16_swap_b32 v{o+1}, v{o+3}')

        def em(st):
            for i, ftl in enumerate(fts):
                o = ACC1 + i * 8
                a(f'buffer_store_dwordx4 v[{o}:{o+3}], v4, {WSQ}, s{sU0 + ftl//4} offen offset:{(ftl%4)*1024} {st}')
        stores2(a, em)

    qa = [('x', k) for k in range(XPRE) for _ in range(2)]

    def hookA(ks, when):
        if when == 'pre':
            if ks + XPRE < 14:
                ldx(ks + XPRE)
                qa.extend([('x', ks + XPRE)] * 2)
            idx = max(k for k, t in enumerate(qa) if t == ('x', ks))
            a(f's_waitcnt vmcnt({len(qa) - 1 - idx})')
            del qa[:idx + 1]
            if ks == 0:
                a.stamp('g1_ld0')
    g1_pass(PASSES[0], hookA)
    a.stamp('g1_A')
    g1_epi(PASSES[0])

    def ldh(i):
        kk = ORDER[i]
        a(f's_add_u32 s{sT2}, s{sU2}, {kk*1024}')
        for rt in range(2):
            d = XB + (rt * 14 + i % 14) * 4
            a(f'buffer_load_dwordx4 v[{d}:{d+3}], v{4 if rt == 0 else 6}, {WSQ}, s{sT2} offen {LDB}')

    def not_g2(l):
        a(f's_cmp_ge_u32 s{sJ}, 14')
        a(f's_cbranch_scc1 {l}')

    def check(n_after, soff):
        l = a.newlabel('ck')
        a(f's_waitcnt vmcnt({n_after})')
        a(f'v_cmp_ne_u32 vcc, s{sNONCE}, v{vPD}')
        a(f's_cbranch_vccz {l}')
        poll(a, SRD_WS, soff, chk_one(a))
        a.label(l)

    NPRE = 3

    def hookB(ks, when):
        if when == 'pre' and ks == 2:
            flag_set(a, fA)
            po_h(a)
        if when == 'pre' and ks == 6:
            a(f'buffer_load_dword v{vPD}, v{vPO}, {WSQ}, s{sP0} offen sc1')
        if when == 'pre' and ks == 10:
            l = a.newlabel('pc')
            not_g2(l)
            check(0, f's{sP0}')
            a.label(l)
            a.stamp('g1_ckA')
        if when == 'post' and 10 <= ks < 10 + NPRE:
            l = a.newlabel('pc')
            not_g2(l)
            ldh(ks - 10)
            a.label(l)
    g1_pass(PASSES[1], hookB)
    a.stamp('g1_B')
    g1_epi(PASSES[1])
    lg2 = a.newlabel('g2')
    a(f's_cmp_lt_u32 s{sJ}, 14')
    a(f's_cbranch_scc1 {lg2}')
    flag_set(a, fB)
    a(f's_branch {lnog2}')
    a.label(lg2)
    queue = [('h', i) for i in range(NPRE) for _ in range(2)] + [('s', 0)] * 2

    def wait_for(tag):
        idx = max(k for k, t in enumerate(queue) if t == tag)
        n = len(queue) - 1 - idx
        a(f's_waitcnt vmcnt({n})')
        del queue[:idx + 1]
    nextld = NPRE
    while nextld < HDEPTH:
        ldh(nextld); queue.extend([('h', nextld)] * 2); nextld += 1
    wait_for(('s', 0))
    flag_set(a, fB, drain=False)
    queue.append(('f', 0))
    lim = 20
    for i in range(28):
        if i == 19 - HDEPTH - 3:
            a(f'buffer_load_dword v{vPD}, v{vPO}, {WSQ}, s{sP0} offen sc1')
            queue.append(('p', 1))
        if nextld == 20 and lim == 20:
            if ('p', 1) in queue:
                idx = queue.index(('p', 1))
                check(len(queue) - 1 - idx, f's{sP0}')
                del queue[:idx + 1]
            else:
                check(len(queue), f's{sP0}')
            a.stamp('g2_ckB')
            lim = 28
        while nextld < lim and nextld <= i + HDEPTH:
            ldh(nextld); queue.extend([('h', nextld)] * 2); nextld += 1
        if any(t == ('h', i) for t in queue):
            wait_for(('h', i))
        if i == 0:
            a.stamp('g2_ld0')
        kk = ORDER[i]
        for ct in range(2):
            for rt in range(2):
                c = ACC2 + (ct * 2 + rt) * 16
                w = (kk * 2 + ct) * 4
                b = XB + (rt * 14 + i % 14) * 4
                cin = '0' if i == 0 else f'v[{c}:{c+15}]'
                a(f'v_mfma_f32_32x32x16_bf16 v[{c}:{c+15}], a[{w}:{w+3}], v[{b}:{b+3}], {cin}')
    assert nextld == 28
    a.stamp('g2_loop')
    a(f's_lshr_b32 s{sT4}, s{sWAVE}, 1')
    a(f's_and_b32 s{sT5}, s{sWAVE}, 1')
    a(f's_add_u32 s{sT2}, s{sT6}, s{sT5}')
    a(f's_lshl_b32 s{sT2}, s{sT2}, 5')
    a(f's_mul_i32 s{sT2}, s{sT2}, {ROWB}')
    a(f's_lshl_b32 s{sT1}, s{sT7}, 7')
    a(f's_add_u32 s{sT2}, s{sT2}, s{sT1}')
    a(f's_lshl_b32 s{sT4}, s{sT4}, 6')
    a(f's_add_u32 s{sT2}, s{sT2}, s{sT4}')
    a('v_and_b32 v8, 31, v0')
    a(f'v_mul_u32_u24 v8, {ROWB}, v8')
    a('v_lshrrev_b32 v9, 5, v0')
    a('v_lshl_add_u32 v8, v9, 4, v8')
    a(f's_add_u32 s{sT3}, s{sT2}, {WS_X3}')
    a(f's_cmp_eq_u32 s{sLAYER}, 0')
    a(f's_cselect_b32 s{sT3}, {OOB:#x}, s{sT3}')
    a(f'buffer_load_dwordx4 v[16:19], v8, {WSQ}, s{sT3} offen sc1')
    a(f'buffer_load_dwordx4 v[20:23], v8, {WSQ}, s{sT3} offen offset:32 sc1')
    a(f'v_add_u32 v7, {L_RED}, v4')
    a('s_nop 7')
    done = a.newlabel('g2d')
    labs = [a.newlabel('g2w') for _ in range(4)]
    for w in range(1, 4):
        a(f's_cmp_eq_u32 s{sWAVE}, {w}')
        a(f's_cbranch_scc1 {labs[w]}')
    for w in range(4):
        a.label(labs[w])
        for T in range(4):
            if T == w:
                continue
            sl = (w - T - 1) & 3
            for g in range(4):
                c = ACC2 + T * 16 + 4 * g
                a(f'ds_write_b128 v7, v[{c}:{c+3}] offset:{(T*3+sl)*4096 + g*1024}')
        for i in range(0, 16, 2):
            a(f'v_mov_b64 v[{32+i}:{33+i}], v[{ACC2+16*w+i}:{ACC2+16*w+i+1}]')
        if w != 3:
            a(f's_branch {done}')
    a.label(done)
    a(f's_mul_i32 s{sT4}, s{sWAVE}, {3*4096}')
    a(f'v_add_u32 v7, s{sT4}, v7')
    a('s_waitcnt lgkmcnt(0)')
    a('s_barrier')
    for sl in range(3):
        for g in range(4):
            d = 48 + sl * 16 + 4 * g
            a(f'ds_read_b128 v[{d}:{d+3}], v7 offset:{sl*4096 + g*1024}')
    for sl in range(3):
        a(f's_waitcnt lgkmcnt({8 - 4*sl})')
        for i in range(0, 16, 2):
            a(f'v_pk_add_f32 v[{32+i}:{33+i}], v[{32+i}:{33+i}], v[{48+sl*16+i}:{49+sl*16+i}]')
    for g in range(4):
        a(f'v_cvt_pk_bf16_f32 v{24+2*g}, v{32+4*g}, v{33+4*g}')
        a(f'v_cvt_pk_bf16_f32 v{25+2*g}, v{34+4*g}, v{35+4*g}')
    a('s_nop 1')
    for p in range(2):
        a(f'v_permlane32_swap_b32 v{24+4*p}, v{26+4*p}')
        a(f'v_permlane32_swap_b32 v{25+4*p}, v{27+4*p}')
    l0 = a.newlabel('g2l0')
    a(f's_cmp_eq_u32 s{sLAYER}, 0')
    a(f's_cbranch_scc1 {l0}')
    srd(a, SRD_A, sOUT, NB)
    a('s_waitcnt vmcnt(0)')
    unpack8(a, 24, 32); unpack8(a, 28, 40)
    unpack8(a, 16, 48); unpack8(a, 20, 56)
    for i in range(0, 16, 2):
        a(f'v_pk_add_f32 v[{32+i}:{33+i}], v[{32+i}:{33+i}], v[{48+i}:{49+i}]')
        a(f'v_cvt_pk_bf16_f32 v{24+i//2}, v{32+i}, v{33+i}')
    a(f'buffer_store_dwordx4 v[24:27], v8, {q(SRD_A)}, s{sT2} offen')
    a(f'buffer_store_dwordx4 v[28:31], v8, {q(SRD_A)}, s{sT2} offen offset:32')
    a(f's_branch {lnog2}')
    a.label(l0)
    a(f's_add_u32 s{sT2}, s{sT2}, {WS_OUT1}')

    def em(st):
        a(f'buffer_store_dwordx4 v[24:27], v8, {WSQ}, s{sT2} offen {st}')
        a(f'buffer_store_dwordx4 v[28:31], v8, {WSQ}, s{sT2} offen offset:32 {st}')
    stores2(a, em)
    flag_set(a, 3)
    a.label(lnog2)


def kd(name, nv=512, acc=256, ns=96):
    return f"""
.section .rodata,"a"
.p2align 6
.amdhsa_kernel {name}
  .amdhsa_next_free_vgpr {nv}
  .amdhsa_next_free_sgpr {ns}
  .amdhsa_accum_offset {acc}
  .amdhsa_group_segment_fixed_size 0
  .amdhsa_kernarg_size 96
  .amdhsa_user_sgpr_count 2
  .amdhsa_user_sgpr_kernarg_segment_ptr 1
  .amdhsa_system_sgpr_workgroup_id_x 1
.end_amdhsa_kernel
"""


def gen(stamps=False):
    a = Asm()
    name = NAME + '_kernel'
    a.L.append(f'.globl {name}\n.p2align 8\n.type {name},@function\n{name}:')
    end = 'L_end'
    prologue(a, name, end)
    a.stamps = stamps
    if stamps:
        a('v_mov_b32 v255, 0')
    a.stamp('start')
    lB, lJoin = a.newlabel('pathB'), a.newlabel('join')
    kv_loads(a)
    q_loads(a)
    if PRETOUCH:
        pretouch(a)
    a(f's_cmp_ge_u32 s{sJ}, 14')
    a(f's_cbranch_scc1 {lB}')
    conv_loads(a)
    def mid():
        a('v_mov_b32 v76, v4')
        a('v_mov_b32 v77, v10')
        a('v_mov_b32 v78, v11')
        a('s_waitcnt vmcnt(0)')
        conv_build(a)
        a('v_mov_b32 v4, v76')
        a('v_mov_b32 v10, v77')
        a('v_mov_b32 v11, v78')
    kv_compute(a, n_after=6 + 2*PRETOUCH, mid=mid)
    a.stamp('kv_st')
    arrive(a, [1])
    a.stamp('kv_arr')
    relayout(a, 0)
    wait_kv(a)
    a.stamp('kv_wait')

    def rl1():
        a('s_waitcnt vmcnt(0)')
        relayout(a, 1)

    def rl2():
        arrive(a, [3])
    conv_main(a, {1: rl1, 6: rl2})
    arrive(a, [2])
    a.stamp('conv_arr')
    code_prefetch(a, name, end)
    ln1_pre(a)
    wait_all1(a)
    a.stamp('w_wait')
    lw, lw2 = a.newlabel('w2w0'), a.newlabel('w2w1')
    a(f's_cmp_eq_u32 s{sWAVE}, 0')
    a(f's_cbranch_scc1 {lw}')
    a('s_barrier')
    load_w1(a)
    load_w2(a)
    a(f's_branch {lw2}')
    a.label(lw)
    load_w2(a)
    a('s_barrier')
    a.label(lw2)
    a.stamp('w1_iss')
    a(f's_branch {lJoin}')
    a.label(lB)
    a.stamps = False
    kv_compute(a, n_after=2 + 2*PRETOUCH)
    arrive(a, [1, 2])
    relayout(a, 0)
    ln1_pre(a)
    a('s_waitcnt vmcnt(0)')
    relayout(a, 1)
    arrive(a, [3])
    wait_all1(a)
    load_w1(a)
    a.stamps = stamps
    a.label(lJoin)
    wait_y_gather(a)
    a.stamp('y_gath')
    ln1_post(a)
    a.stamp('ln1_st')
    flag_set(a, 0)
    a('s_barrier')
    a.stamp('xn1_flag')
    a(f's_mov_b32 s{sLAYER}, 0')
    lLoop, lFin = a.newlabel('layer'), a.newlabel('fin')
    a.label(lLoop)
    a.lstamp = True
    flag_wait(a, 0, po_xn)
    a.stamp('xn_wait')
    mlp(a)
    a.stamp('mlp')
    a.lstamp = False
    a(f's_cmp_lg_u32 s{sLAYER}, 0')
    a(f's_cbranch_scc1 {lFin}')
    a.ns += 12
    flag_wait(a, 3, po_out)
    a.stamp('out_wait')
    ln_mid(a)
    a.stamp('ln2_st')
    a(f's_add_u32 s{sFL}, s{sFL}, {4*4096}')
    a(f's_mov_b32 s{sLAYER}, 1')
    flag_set(a, 0)
    a.stamp('xn3_flag')
    a(f's_branch {lLoop}')
    a.label(lFin)
    if stamps:
        a('s_waitcnt vmcnt(0)')
        a.stamp('end')
        a(f's_lshl_b32 s{sT0}, s2, 2')
        a(f's_add_u32 s{sT0}, s{sT0}, s{sWAVE}')
        a(f's_lshl_b32 s{sT0}, s{sT0}, 8')
        a(f's_add_u32 s{sT0}, s{sT0}, {WS_STAMP}')
        a('v_lshlrev_b32 v1, 2, v0')
        a(f'buffer_store_dword v255, v1, {WSQ}, s{sT0} offen')
    a.label(end)
    a('s_endpgm')
    head = HEADER + f'; @launch kernel={name} grid=(256,1,1) block=(256,1,1) lds={LDS_TOTAL}\n'
    if stamps:
        head += '; STAMPS ' + ','.join(f'{i}:{n}' for i, n in sorted(a.names.items())) + '\n'
    return head + '.amdgcn_target "amdgcn-amd-amdhsa--gfx950"\n.text\n' + a.text() + kd(name)


if __name__ == '__main__':
    mode = sys.argv[1] if len(sys.argv) > 1 else 'plain'
    out = sys.argv[2] if len(sys.argv) > 2 else f'cdna_kernels/{NAME}.s'
    txt = gen(stamps=(mode == 'stamps'))
    open(out, 'w').write(txt)
    print('wrote', out, len(txt))
```
